```python
import torch

def _softmax(x, axis=-1):
    return torch.softmax(x, dim=axis)
def _gelu(x):
    return torch.nn.functional.gelu(x, approximate="tanh")
def _silu(x):
    return torch.nn.functional.silu(x)
def _sigmoid(x):
    return torch.sigmoid(x)
def _layernorm(x, axis=-1, eps=1e-5):
    m = x.mean(dim=axis, keepdim=True)
    v = x.var(dim=axis, keepdim=True, unbiased=False)
    return (x - m) / torch.sqrt(v + eps)
def _scatter_add(tgt, idx, src, axis=0):
    return tgt.clone().index_add_(axis, idx, src)
def _segment_sum(src, seg, n):
    out = torch.zeros((n,) + src.shape[1:], dtype=src.dtype)
    return out.index_add_(0, seg, src)
def _pad(x, pw):
    flat = tuple(v for pair in reversed(pw) for v in pair)
    return torch.nn.functional.pad(x, flat)

kernel_name = 'gather_scatter__edge_featured_mpnn_mpnn__graph'

def setup_inputs():

    _w = (lambda a: (lambda t: t.to(torch.bfloat16) if t.is_floating_point() else t)(torch.as_tensor(a)))
    N, deg, D, De = 25000, 16, 128, max(0, 1)
    E = N * deg
    H = 2 * D
    return {
        "x": _w((lambda *s: torch.randn(*s, dtype=torch.bfloat16) * 0.05)(N, D)),
        "e_attr": _w((lambda *s: torch.randn(*s, dtype=torch.bfloat16) * 1.6)(E, De)),
        "src": _w((lambda lo, hi, *s: torch.randint(lo, hi, s))(0, N, E).to(torch.int64)),
        "dst": _w((lambda lo, hi, *s: torch.randint(lo, hi, s))(0, N, E).to(torch.int64)),
        "w1": _w((lambda *s: torch.randn(*s, dtype=torch.bfloat16) * 1.6)(2 * D + De, H) * (1.0 / (2 * D + De) ** 0.5)),
        "b1": _w((lambda *s: torch.randn(*s, dtype=torch.bfloat16) * 1.6)(H) * 0.01),
        "w2": _w((lambda *s: torch.randn(*s, dtype=torch.bfloat16) * 0.05)(H, D) * (1.0 / H ** 0.5)),
        "b2": _w((lambda *s: torch.randn(*s, dtype=torch.bfloat16) * 0.05)(D) * 0.01),
    }

def reference(x, e_attr, src, dst, w1, b1, w2, b2):
    N, D = x.shape
    h_src = x[src]
    h_dst = x[dst]
    m_in = torch.concatenate([h_src, h_dst, e_attr], axis=-1)
    h = _silu(m_in @ w1 + b1)
    msg = h @ w2 + b2
    return _segment_sum(msg, dst, N)
```

```python
import re
import sys

TRANS = ("v_exp_f32", "v_rcp_f32", "v_log_f32", "v_rsq_f32", "v_sqrt_f32", "v_rcp_iflag_f32")


def regs_of(tok):
    tok = tok.strip()
    tok = tok.lstrip("-")
    m = re.fullmatch(r"abs\((.*)\)", tok)
    if m:
        tok = m.group(1)
    tok = tok.strip("|")
    m = re.fullmatch(r"([vsa])(\d+)", tok)
    if m:
        return {(m.group(1), int(m.group(2)))}
    m = re.fullmatch(r"([vsa])\[(\d+):(\d+)\]", tok)
    if m:
        return {(m.group(1), i) for i in range(int(m.group(2)), int(m.group(3)) + 1)}
    if tok == "vcc":
        return {("s", "vcc_lo"), ("s", "vcc_hi")}
    if tok in ("vcc_lo", "vcc_hi"):
        return {("s", tok)}
    if tok == "exec":
        return {("s", "exec_lo"), ("s", "exec_hi")}
    if tok in ("exec_lo", "exec_hi"):
        return {("s", tok)}
    if tok == "m0":
        return {("s", "m0")}
    return set()


VCC = {("s", "vcc_lo"), ("s", "vcc_hi")}
EXEC = {("s", "exec_lo"), ("s", "exec_hi")}


class I:
    def __init__(self, text, lineno):
        self.text = text
        self.lineno = lineno
        parts = text.split(None, 1)
        self.op = parts[0]
        rest = parts[1] if len(parts) > 1 else ""
        ops, depth, cur = [], 0, ""
        for ch in rest:
            if ch == "[":
                depth += 1
            if ch == "]":
                depth -= 1
            if ch == "," and depth == 0:
                ops.append(cur.strip())
                cur = ""
            else:
                cur += ch
        if cur.strip():
            ops.append(cur.strip())
        self.mods = ""
        if ops:
            last = ops[-1].split(None, 1)
            if len(last) > 1 and not self.op.startswith("s_waitcnt"):
                ops[-1] = last[0]
                self.mods = last[1]
        self.ops = ops
        self.classify()

    def classify(self):
        op, ops = self.op, self.ops
        base = re.sub(r"_(e32|e64|sdwa|dpp)$", "", op)
        self.base = base
        self.is_mfma = base.startswith("v_mfma") or base.startswith("v_smfmac")
        self.is_valu = base.startswith("v_") and not self.is_mfma
        self.is_trans = base in TRANS
        self.is_ds = base.startswith("ds_")
        self.is_vmem = base.startswith("buffer_") or base.startswith("global_")
        self.is_smem = base.startswith("s_load") or base.startswith("s_memtime") or base.startswith("s_memrealtime")
        self.is_salu = base.startswith("s_") and not self.is_smem
        self.is_dpp = op.endswith("_dpp") or "row_" in self.mods or "quad_perm" in self.mods
        self.lds_dma = self.is_vmem and re.search(r"\blds\b", self.mods) is not None
        self.defs, self.uses = set(), set()
        self.srcC = set()
        self.srcAB = set()
        self.async_defs = set()
        R = regs_of
        if self.is_mfma:
            self.defs = R(ops[0])
            self.srcAB = R(ops[1]) | R(ops[2])
            if base.startswith("v_smfmac"):
                self.srcC = R(ops[0])
                self.srcAB |= R(ops[3])
            else:
                self.srcC = R(ops[3])
            self.uses = self.srcAB | self.srcC
            self.passes = 8 if "32x32" in base else 4
        elif self.is_valu:
            if base.startswith("v_cmpx"):
                self.defs = R(ops[0]) | EXEC
                for o in ops[1:]:
                    self.uses |= R(o)
            elif base.startswith("v_cmp"):
                self.defs = R(ops[0])
                for o in ops[1:]:
                    self.uses |= R(o)
            elif base in ("v_add_co_u32", "v_sub_co_u32", "v_addc_co_u32", "v_subb_co_u32"):
                self.defs = R(ops[0]) | R(ops[1])
                for o in ops[2:]:
                    self.uses |= R(o)
            elif base.startswith("v_permlane"):
                self.defs = R(ops[0]) | R(ops[1])
                self.uses = set(self.defs)
            elif base == "v_nop":
                pass
            else:
                self.defs = R(ops[0])
                for o in ops[1:]:
                    self.uses |= R(o)
                if base in ("v_fmac_f32", "v_writelane_b32", "v_dot2c_f32_bf16") or self.is_dpp:
                    self.uses |= R(ops[0])
        elif self.is_ds:
            if base.startswith("ds_read") or "_rtn_" in base or base.startswith("ds_bpermute") or base.startswith("ds_swizzle"):
                self.async_defs = R(ops[0])
                for o in ops[1:]:
                    self.uses |= R(o)
                if "d16" in base:
                    self.uses_partial = True
            else:
                for o in ops:
                    self.uses |= R(o)
        elif self.is_vmem:
            if self.lds_dma:
                for o in ops:
                    self.uses |= R(o)
                self.uses |= {("s", "m0")}
            elif "load" in base:
                self.async_defs = R(ops[0])
                for o in ops[1:]:
                    self.uses |= R(o)
            elif "atomic" in base:
                if "sc0" in self.mods:
                    self.async_defs = R(ops[0])
                for o in ops:
                    self.uses |= R(o)
            else:
                for o in ops:
                    self.uses |= R(o)
        elif self.is_smem:
            self.async_defs = R(ops[0])
            for o in ops[1:]:
                self.uses |= R(o)
        elif self.is_salu:
            if base.startswith("s_cmp") or base.startswith("s_cbranch") or base in (
                "s_branch", "s_barrier", "s_endpgm", "s_nop", "s_waitcnt", "s_setprio", "s_sleep", "s_bitcmp1_b32", "s_bitcmp0_b32"):
                for o in ops:
                    self.uses |= R(o)
                if base in ("s_cbranch_vccz", "s_cbranch_vccnz"):
                    self.uses |= VCC
                if base in ("s_cbranch_execz", "s_cbranch_execnz"):
                    self.uses |= EXEC
            else:
                self.defs = R(ops[0])
                for o in ops[1:]:
                    self.uses |= R(o)
                if "saveexec" in base:
                    self.defs |= EXEC
                    self.uses |= EXEC
                if base in ("s_addk_i32", "s_mulk_i32"):
                    self.uses |= R(ops[0])
        self.states = 1
        if base == "s_nop":
            self.states = int(ops[0], 0) + 1
        self.wait = {}
        if base == "s_waitcnt":
            for m in re.finditer(r"(vmcnt|lgkmcnt|expcnt)\((\d+)\)", self.text):
                self.wait[m.group(1)] = int(m.group(2))
        self.store_data = set()
        if self.is_vmem and "store" in base and (base.endswith("x4") or base.endswith("x3")):
            self.store_data = R(ops[0]) if base.startswith("buffer") else R(ops[1])


def parse(text):
    ins, labels = [], {}
    for n, line in enumerate(text.splitlines(), 1):
        line = line.split(";")[0].split("//")[0].strip()
        if not line:
            continue
        if line.startswith("."):
            if not line.endswith(":"):
                if line.startswith(".section"):
                    break
                continue
        m = re.fullmatch(r"([\w.$]+):", line)
        if m:
            labels[m.group(1)] = len(ins)
            continue
        ins.append(I(line, n))
    return ins, labels


def cfg(ins, labels):
    preds = [[] for _ in ins]
    for k, i in enumerate(ins):
        succ = []
        if i.base == "s_endpgm":
            pass
        elif i.base == "s_branch":
            succ = [labels[i.ops[0]]]
        elif i.base.startswith("s_cbranch"):
            succ = [labels[i.ops[0]], k + 1]
        else:
            succ = [k + 1]
        for s in succ:
            if s < len(ins):
                preds[s].append(k)
    return preds


def vregs(s):
    return {r for r in s if r[0] in "va"}


def sregs(s):
    return {r for r in s if r[0] == "s"}


def need(p, c):
    n = 0
    why = ""

    def up(v, w):
        nonlocal n, why
        if v > n:
            n, why = v, w

    cread = c.uses
    cwrite = c.defs | c.async_defs
    if p.is_mfma:
        d = p.defs
        big = {8: 12, 4: 8}[p.passes]
        if c.is_mfma:
            if c.srcAB & d:
                up(big, "mfma D -> mfma A/B")
            if c.srcC & d and (c.srcC != d or c.passes != p.passes):
                up(big - 2, "mfma D -> mfma C partial")
            if c.defs & d and not (c.srcC & d) :
                up(big - 2, "mfma D -> mfma D (WAW, new chain)")
        else:
            if (cread | cwrite) & d and (c.is_valu or c.is_vmem or c.is_ds):
                up(big, "mfma D -> valu/mem")
        if c.is_valu and c.defs & p.srcC:
            up({8: 7, 4: 3}[p.passes], "mfma srcC WAR")
    if p.is_valu:
        vd = vregs(p.defs)
        sd = sregs(p.defs) - EXEC
        if c.is_mfma and c.uses & vd:
            up(2, "valu -> mfma operand")
        if p.is_trans and c.is_valu and not c.is_trans and c.uses & vd:
            up(1, "trans -> use")
        if p.is_trans and (c.is_ds or c.is_vmem) and c.uses & vd:
            up(1, "trans -> mem use")
        if c.base in ("v_readlane_b32", "v_readfirstlane_b32") and c.uses & vd:
            up(1, "valu -> readlane")
        if c.is_valu and c.is_dpp and c.uses & vd:
            up(2, "valu -> dpp")
        if c.base.startswith("v_permlane") and c.uses & vd:
            up(2, "valu -> permlane")
        if sd:
            if c.is_valu and c.uses & sd:
                up(2, "valu sgpr -> valu const/mask")
            if c.base in ("v_readlane_b32", "v_writelane_b32") and c.uses & sd:
                up(4, "valu sgpr -> lane select")
            if c.is_vmem and c.uses & sd:
                up(5, "valu sgpr -> vmem")
        if p.defs & EXEC:
            if c.base in ("v_readlane_b32", "v_readfirstlane_b32", "v_writelane_b32") or c.base.startswith("v_permlane"):
                up(4, "cmpx -> lane op")
            if c.is_valu and c.is_dpp:
                up(5, "cmpx -> dpp")
            if c.is_mfma:
                up(4, "cmpx -> mfma")
            if c.is_valu and c.uses & EXEC:
                up(2, "cmpx -> exec const")
        if "sdwa" in p.op and "dst_sel:DWORD" not in p.mods and c.is_valu and (c.uses | c.defs) & vd:
            up(1, "sdwa dst")
    if p.is_salu and ("s", "m0") in p.defs and c.lds_dma:
        up(1, "m0 -> lds dma")
    if p.store_data and cwrite & p.store_data:
        up(2 if c.is_valu or c.is_mfma else 1, "wide store data WAR")
    return n, why


def check_hazards(ins, preds, out):
    bad = 0
    MAXD = 12
    for k, c in enumerate(ins):
        seen = {}
        stack = [(p, 0) for p in preds[k]]
        while stack:
            j, dist = stack.pop()
            if j in seen and seen[j] <= dist:
                continue
            seen[j] = dist
            p = ins[j]
            n, why = need(p, c)
            if n > dist:
                out.append(f"HAZARD {why}: need {n} have {dist}: L{p.lineno} '{p.text}' -> L{c.lineno} '{c.text}'")
                bad += 1
            d2 = dist + p.states
            if d2 < MAXD:
                for q in preds[j]:
                    stack.append((q, d2))
    return bad


def cls_of(i):
    if i.is_vmem:
        return "vmcnt"
    if i.is_ds or i.is_smem:
        return "lgkmcnt"
    return None


def check_waits(ins, preds, out):
    bad = 0
    INF = 10 ** 6
    for k, c in enumerate(ins):
        touched = c.uses | c.defs | c.async_defs
        touched = {r for r in touched if not (r[0] == "s" and isinstance(r[1], str))}
        if not touched:
            continue
        for cl in ("vmcnt", "lgkmcnt"):
            seen = set()
            stack = [(p, INF, frozenset(touched)) for p in preds[k]]
            while stack:
                j, bud, live = stack.pop()
                key = (j, bud, live)
                if key in seen:
                    continue
                seen.add(key)
                p = ins[j]
                if cl in p.wait:
                    bud = min(bud, p.wait[cl])
                if bud == 0:
                    continue
                if cls_of(p) == cl:
                    hit = p.async_defs & live
                    if hit:
                        only_waw = cls_of(c) == cl and not (hit & c.uses) and not p.is_smem and not c.is_smem
                        if not only_waw:
                            out.append(f"UNWAITED {cl}: L{p.lineno} '{p.text}' -> L{c.lineno} '{c.text}'")
                            bad += 1
                        live = live - hit
                    if p.is_smem:
                        pass
                    elif bud < INF:
                        bud -= 1
                        if bud == 0:
                            continue
                live = live - p.defs
                if not live:
                    continue
                for q in preds[j]:
                    stack.append((q, bud, live))
    return bad


def check(text):
    ins, labels = parse(text)
    preds = cfg(ins, labels)
    out = []
    b = check_hazards(ins, preds, out)
    b += check_waits(ins, preds, out)
    seen = set()
    res = []
    for o in out:
        if o not in seen:
            seen.add(o)
            res.append(o)
    return res


if __name__ == "__main__":
    r = check(open(sys.argv[1]).read())
    for x in r:
        print(x)
    print(len(r), "findings")
```

```python
import argparse
import re
import struct
import sys

NAME = "gather_scatter__edge_featured_mpnn_mpnn__graph"
N, E = 25000, 400000
NCH, CH = 250, 1600
NT, TN, GA = 511, 49, 25
REC, TAB, TABSTR, WFR, SAVE = 0, 0x320000, 2176, 0x3C0000, 0x400000
WS_BYTES = 0x10000000
NPREP = 24
LOG2E = 1.4426950408889634
LN2 = 0.6931471805599453


def f32(x):
    return "0x%08x" % struct.unpack("<I", struct.pack("<f", x))[0]


def vr(a, n=1):
    return f"v{a}" if n == 1 else f"v[{a}:{a + n - 1}]"


def sr(a, n=1):
    return f"s{a}" if n == 1 else f"s[{a}:{a + n - 1}]"


class Asm:
    def __init__(self):
        self.l = []

    def __call__(self, s):
        for x in s.strip("\n").split("\n"):
            x = x.strip()
            if x:
                self.l.append(x if x.endswith(":") else "    " + x)

    def label(self, s):
        self.l.append(s + ":")

    def c(self, s):
        self.l.append("    ; " + s)

    def text(self):
        return "\n".join(self.l) + "\n"


def srd(a, s, base_lo, base_hi, nbytes):
    a(f"s_mov_b32 s{s}, s{base_lo}")
    a(f"s_and_b32 s{s + 1}, s{base_hi}, 0xffff")
    a(f"s_mov_b32 s{s + 2}, {nbytes:#x}")
    a(f"s_mov_b32 s{s + 3}, 0x20000")


def gen_bin(a, opt):
    HIST, WOFF, STG = 0, 4096, 4160
    a.label("bin_kernel")
    a(f"s_cmp_ge_u32 s2, {NCH + NPREP}")
    a("s_cbranch_scc1 bin_done")
    a(f"s_cmp_ge_u32 s2, {NCH}")
    a("s_cbranch_scc1 bin_prep")
    a("s_load_dwordx4 s[4:7], s[0:1], 8")
    a("s_load_dwordx2 s[8:9], s[0:1], 24")
    a("s_load_dwordx2 s[10:11], s[0:1], 80")
    a("v_lshlrev_b32 v1, 3, v0")
    a("v_mov_b32 v2, 0")
    a("v_mov_b32 v3, 0")
    a(f"ds_write_b64 v1, v[2:3] offset:{HIST}")
    a("v_cmp_gt_u32 vcc, 8, v0")
    a("s_and_saveexec_b64 s[36:37], vcc")
    a("v_lshlrev_b32 v4, 2, v0")
    a(f"ds_write_b32 v4, v2 offset:{WOFF}")
    a("s_mov_b64 exec, s[36:37]")
    a("v_lshlrev_b32 v4, 4, v0")
    a("s_mul_i32 s28, s2, 6400")
    a("s_mul_i32 s29, s2, 3200")
    a("s_waitcnt lgkmcnt(0)")
    srd(a, 12, 8, 9, E * 4)
    srd(a, 16, 6, 7, E * 4)
    srd(a, 20, 4, 5, E * 2)
    srd(a, 24, 10, 11, WS_BYTES)
    a("buffer_load_dwordx4 v[8:11], v4, s[12:15], s28 offen")
    a("buffer_load_dwordx4 v[12:15], v4, s[16:19], s28 offen")
    a("buffer_load_dwordx2 v[16:17], v1, s[20:23], s29 offen")
    a("s_barrier")
    a(f"v_cmp_gt_u32 vcc, {CH // 4}, v0")
    a("s_and_saveexec_b64 s[36:37], vcc")
    a("s_mov_b64 s[38:39], exec")
    a("v_mov_b32 v5, 1")
    a("s_waitcnt vmcnt(2)")
    for i in range(4):
        d, g, dl = 8 + i, 20 + i, 24 + i
        a(f"v_mul_u32_u24 v{g}, 21400, v{d}")
        a(f"v_lshrrev_b32 v{g}, 20, v{g}")
        a(f"v_mul_u32_u24 v{dl}, {TN}, v{g}")
        a(f"v_sub_u32 v{dl}, v{d}, v{dl}")
        a(f"v_cmp_le_u32 vcc, {GA}, v{dl}")
        a(f"v_lshlrev_b32 v{g}, 3, v{g}")
        a(f"v_subrev_u32 v6, {GA}, v{dl}")
        a(f"v_cndmask_b32 v{dl}, v{dl}, v6, vcc")
        a(f"v_add_u32 v6, 4, v{g}")
        a(f"v_cndmask_b32 v{g}, v{g}, v6, vcc")
        a(f"ds_add_rtn_u32 v{28 + i}, v{g}, v5 offset:{HIST}")
    a("s_waitcnt vmcnt(0)")
    a("s_mov_b32 s30, 0x01000100")
    a("s_mov_b32 s31, 0x03020302")
    for i in range(4):
        a(f"v_lshlrev_b32 v{24 + i}, 1, v{24 + i}")
        a(f"v_lshl_or_b32 v{32 + 2 * i}, v{12 + i}, 8, v{24 + i}")
        a(f"v_perm_b32 v{33 + 2 * i}, v{16 + i // 2}, v{16 + i // 2}, s{30 + i % 2}")
    a("s_mov_b64 exec, s[36:37]")
    a("s_waitcnt lgkmcnt(0)")
    a("s_barrier")
    a(f"ds_read_b64 v[40:41], v1 offset:{HIST}")
    a("v_lshrrev_b32 v7, 6, v0")
    a("v_and_b32 v6, 63, v0")
    a("s_waitcnt lgkmcnt(0)")
    a("v_add_u32 v42, v40, v41")
    a("v_mov_b32 v43, v42")
    for sh in (1, 2, 4, 8):
        a("s_nop 1")
        a(f"v_add_u32_dpp v43, v43, v43 row_shr:{sh} row_mask:0xf bank_mask:0xf")
    a("s_nop 1")
    a("v_add_u32_dpp v43, v43, v43 row_bcast:15 row_mask:0xa bank_mask:0xf")
    a("s_nop 1")
    a("v_add_u32_dpp v43, v43, v43 row_bcast:31 row_mask:0xc bank_mask:0xf")
    a("s_nop 0")
    a("v_readlane_b32 s32, v43, 63")
    a("v_cmp_lt_u32 vcc, v7, v6")
    a("v_cmp_gt_u32 s[34:35], 8, v6")
    a("v_lshlrev_b32 v44, 2, v6")
    a("v_mov_b32 v45, s32")
    a("s_and_b64 exec, vcc, s[34:35]")
    a(f"ds_add_u32 v44, v45 offset:{WOFF}")
    a("s_mov_b64 exec, s[36:37]")
    a("v_lshlrev_b32 v44, 2, v7")
    a("v_sub_u32 v43, v43, v42")
    a("s_waitcnt lgkmcnt(0)")
    a("s_barrier")
    a(f"ds_read_b32 v44, v44 offset:{WOFF}")
    a(f"s_mul_i32 s28, s2, {TABSTR}")
    a(f"s_add_u32 s28, s28, {TAB:#x}")
    a("v_lshlrev_b32 v46, 2, v0")
    a("s_waitcnt lgkmcnt(0)")
    a("v_add_u32 v42, v43, v44")
    a("v_add_u32 v43, v42, v40")
    a(f"ds_write_b64 v1, v[42:43] offset:{HIST}")
    a("v_lshl_or_b32 v44, v43, 16, v42")
    a("buffer_store_dword v44, v46, s[24:27], s28 offen")
    a("s_waitcnt lgkmcnt(0)")
    a("s_barrier")
    a("s_mov_b64 exec, s[38:39]")
    for i in range(4):
        a(f"ds_read_b32 v{20 + i}, v{20 + i} offset:{HIST}")
    for i in range(4):
        a(f"s_waitcnt lgkmcnt({3 - i if i == 0 else 3})")
        a(f"v_add_lshl_u32 v{20 + i}, v{20 + i}, v{28 + i}, 3")
        a(f"ds_write_b64 v{20 + i}, v[{32 + 2 * i}:{33 + 2 * i}] offset:{STG}")
    a("s_mov_b64 exec, s[36:37]")
    a(f"s_mul_i32 s28, s2, {CH * 8}")
    a("s_waitcnt lgkmcnt(0)")
    a("s_barrier")
    a(f"ds_read_b128 v[8:11], v4 offset:{STG}")
    a(f"v_cmp_gt_u32 vcc, {CH * 8 // 16 - 512}, v0")
    a("v_add_u32 v5, 8192, v4")
    a("s_waitcnt lgkmcnt(0)")
    a("buffer_store_dwordx4 v[8:11], v4, s[24:27], s28 offen")
    a("s_and_b64 exec, exec, vcc")
    a("s_cbranch_execz bin_done")
    a(f"ds_read_b128 v[12:15], v5 offset:{STG}")
    a("s_waitcnt lgkmcnt(0)")
    a("buffer_store_dwordx4 v[12:15], v5, s[24:27], s28 offen")
    a.label("bin_done")
    a("s_endpgm")

    a.label("bin_prep")
    a("s_load_dwordx2 s[4:5], s[0:1], 32")
    a("s_load_dwordx2 s[6:7], s[0:1], 48")
    a("s_load_dwordx2 s[10:11], s[0:1], 80")
    a(f"s_sub_u32 s28, s2, {NCH}")
    a("s_lshr_b32 s29, s28, 3")
    a("s_and_b32 s30, s28, 7")
    a("v_lshrrev_b32 v1, 6, v0")
    a("s_lshl_b32 s31, s30, 3")
    a("v_add_u32 v1, s31, v1")
    a("v_and_b32 v2, 31, v0")
    a("v_bfe_u32 v3, v0, 5, 1")
    a("s_lshl_b32 s33, s28, 13")
    a(f"s_add_u32 s33, s33, {WFR:#x}")
    a("v_lshlrev_b32 v4, 4, v0")
    a("s_cmp_eq_u32 s29, 0")
    a(f"s_cselect_b32 s32, {f32(-LOG2E)}, 1.0")
    a("s_waitcnt lgkmcnt(0)")
    srd(a, 24, 10, 11, WS_BYTES)
    a("s_cmp_eq_u32 s29, 2")
    a("s_cbranch_scc1 bin_prep_w2")
    srd(a, 12, 4, 5, 257 * 512)
    a("v_and_b32 v5, 7, v1")
    a("v_lshlrev_b32 v5, 13, v5")
    a("v_lshl_add_u32 v5, v3, 12, v5")
    a("v_lshrrev_b32 v6, 3, v1")
    a("v_lshl_add_u32 v5, v6, 6, v5")
    a("v_lshl_add_u32 v5, v2, 1, v5")
    a("s_lshl_b32 s34, s29, 16")
    for t in range(8):
        a(f"buffer_load_ushort v{8 + t}, v5, s[12:15], s34 offen offset:{t * 512}")
    a("s_branch bin_prep_cvt")
    a.label("bin_prep_w2")
    srd(a, 12, 6, 7, 256 * 256)
    a("v_and_b32 v5, 15, v1")
    a("v_lshlrev_b32 v5, 12, v5")
    a("v_lshl_add_u32 v5, v3, 10, v5")
    a("v_lshrrev_b32 v6, 4, v1")
    a("v_lshl_add_u32 v5, v6, 6, v5")
    a("v_bfe_u32 v6, v2, 2, 1")
    a("v_lshl_add_u32 v5, v6, 5, v5")
    a("v_lshrrev_b32 v6, 3, v2")
    a("v_lshl_add_u32 v5, v6, 3, v5")
    a("v_and_b32 v6, 3, v2")
    a("v_lshl_add_u32 v5, v6, 1, v5")
    for t in range(8):
        a(f"buffer_load_ushort v{8 + t}, v5, s[12:15], 0 offen offset:{(t if t < 4 else t + 4) * 256}")
    a.label("bin_prep_cvt")
    a("s_waitcnt vmcnt(0)")
    for t in range(8):
        a(f"v_lshlrev_b32 v{8 + t}, 16, v{8 + t}")
        a(f"v_mul_f32 v{8 + t}, s32, v{8 + t}")
    for t in range(4):
        a(f"v_cvt_pk_bf16_f32 v{16 + t}, v{8 + 2 * t}, v{9 + 2 * t}")
    a("buffer_store_dwordx4 v[16:19], v4, s[24:27], s33 offen")
    a("s_endpgm")
    return dict(vgpr=48, sgpr=48, lds=STG + CH * 8, grid=NCH + NPREP, block=512)


XT, PT = 8704, 2176
XR = 0
PR = XR + 3 * XT
ST = PR + 3 * PT
LA = ST + 2 * XT
CAP = 512
LSZ = (2 * CAP + 96) * 8
CN = LA + LSZ
RS = CN + 256
TEAMSZ = (RS + 8 + 127) // 128 * 128
PADREC = 0x7FFFFF00 | (29 << 1)

W, S, Z, X, BT, P1, P2, H, T = 0, 64, 96, 128, 160, 176, 184, 192, 200
vXA0, vXA1, vP1A, vP2A, vCO, vLA, vPW = 208, 209, 210, 211, 212, 213, 214
vOLD = 215
vONE, vZERO = 218, 219
vREC = 220
vHOLD = 224
vD0, vD1 = 226, 227
vCURA, vREMA, vCURB, vREMB = 228, 229, 230, 231
vPOSA, vPOSB, vTKA, vTKB = 232, 233, 234, 235
vTID, vLANE, vL16, vFA, vCHB = 236, 237, 238, 239, 240
vB1S = 242
vCPK = 246
vOFA, vOFB, vNA, vNB = 248, 249, 250, 251
vT0, vT1, vT2, vT3 = 252, 253, 254, 255
sX, sWS, sOUT, sTMP = 4, 8, 12, 16
sQ, sTB, sW, sM0X, sT, sT0, sT0M1, sTN, sTNM1, sROUND, sMORE, sBASE = range(20, 32)
sONE, sNEGL, sNLN2, sMPB, sSEL, sHI, sSAVE = 32, 34, 36, 38, 40, 42, 44
sFF, sA, sB, sC, sD, sE = 46, 47, 48, 49, 50, 51
sW1P, sB1P, sB2P = 52, 54, 56
sSAVEO = 58


class Stream:
    def __init__(self, a):
        self.a = a
        self.pend = []

    @staticmethod
    def regs(tok):
        m = re.fullmatch(r"v(\d+)", tok)
        if m:
            return {int(m.group(1))}
        m = re.fullmatch(r"v\[(\d+):(\d+)\]", tok)
        if m:
            return set(range(int(m.group(1)), int(m.group(2)) + 1))
        return set()

    def emit(self, s):
        op, _, rest = s.partition(" ")
        toks = re.findall(r"v\[\d+:\d+\]|v\d+", rest)
        allr = set()
        for t in toks:
            allr |= self.regs(t)
        isds = op.startswith("ds_")
        dst = set()
        if isds and op.startswith("ds_read"):
            dst = self.regs(toks[0])
            allr = set()
            for t in toks[1:]:
                allr |= self.regs(t)
        need = -1
        for i, p in enumerate(self.pend):
            if p & allr:
                need = i
        if need >= 0:
            n = len(self.pend) - 1 - need
            self.wait(n)
        self.a(s)
        if isds:
            self.pend.append(dst)

    def wait(self, n, extra=""):
        n = min(n, 15)
        self.a(f"s_waitcnt {extra}lgkmcnt({n})")
        self.pend = self.pend[len(self.pend) - n:] if n else []

    def wait_writes(self, extra=""):
        last = -1
        for i, p in enumerate(self.pend):
            if not p:
                last = i
        if last >= 0:
            self.wait(len(self.pend) - 1 - last, extra)
        elif extra:
            self.a(f"s_waitcnt {extra.strip()}")


def mfma(d, a_, b, c):
    cs = "0" if c is None else vr(c, 16)
    return f"v_mfma_f32_32x32x16_bf16 {vr(d, 16)}, {vr(a_, 4)}, {vr(b, 4)}, {cs}"


def silu_stream(zc, zp):
    out = []
    for k in range(8):
        t = T + 2 * (k & 1)
        tp = T + 2 * ((k + 1) & 1)
        zprev = zc + 2 * (k - 1) if k else zp + 14
        hprev = H + (k - 1) % 8
        out += [
            f"v_exp_f32 v{t}, v{zc + 2 * k}",
            f"v_exp_f32 v{t + 1}, v{zc + 2 * k + 1}",
            f"v_pk_mul_f32 {vr(tp, 2)}, {vr(zprev, 2)}, {vr(tp, 2)}",
            f"v_pk_add_f32 {vr(t, 2)}, {vr(t, 2)}, {sr(sONE, 2)}",
            f"v_cvt_pk_bf16_f32 v{hprev}, v{tp}, v{tp + 1}",
            f"v_rcp_f32 v{t}, v{t}",
            f"v_rcp_f32 v{t + 1}, v{t + 1}",
        ]
    return out


def xread(j, slot_off):
    ad = vXA1 if j & 1 else vXA0
    return f"ds_read_b128 {vr(X + 4 * j, 4)}, v{ad} offset:{slot_off + (j >> 1) * 64}"


def p1read(m, slot):
    return f"ds_read_b128 {vr(P1 + 4 * m, 4)}, v{vP1A} offset:{slot * PT + m * 32}"


def p2read(m, i, slot):
    return f"ds_read_b64_tr_b16 {vr(P2 + 4 * m + 2 * i, 2)}, v{vP2A} offset:{slot * PT + (4 * m + 2 * i) * 272}"


def g1(ct, zb):
    out = []
    for j in range(8):
        out.append(mfma(zb, X + 4 * j, W + 32 * ct + 4 * j, None if j == 0 else zb))
    for m in range(2):
        out.append(mfma(zb, P1 + 4 * m, BT + 8 * ct + 4 * m, zb))
    return out


def agg(c, m):
    return mfma(S + 16 * c, H + 4 * m, P2 + 4 * m, S + 16 * c)


G1POS = [2, 10, 14, 18, 22, 26, 30, 34, 38, 42]
AG1POS, AG0POS = 6, 49


def pbuild(slot):
    return [
        f"s_mov_b64 exec, {sr(sMPB, 2)}",
        f"ds_write_b16 v{vOLD + slot}, v{vZERO} offset:{slot * PT}",
        f"v_add_u32_sdwa v{vOLD + slot}, v{vPW}, v{vHOLD} dst_sel:DWORD dst_unused:UNUSED_PAD src0_sel:DWORD src1_sel:BYTE_0",
        f"ds_write_b32 v{vPW}, v{vHOLD + 1} offset:{slot * PT + 60}",
        f"ds_write_b16 v{vOLD + slot}, v{vONE} offset:{slot * PT}",
        "s_mov_b64 exec, -1",
    ]


def listread(tile_imm):
    o = tile_imm * 32
    return f"ds_read2_b64 {vr(vREC, 4)}, v{vLA} offset0:{o} offset1:{o + 4}"


def dma_and_hold(slot):
    return [
        f"v_bfi_b32 v{vD0}, s{sFF}, v{vCO}, v{vREC}",
        f"s_add_u32 m0, s{sM0X}, {slot * XT}",
        f"v_bfi_b32 v{vD1}, s{sFF}, v{vCO}, v{vREC + 2}",
        f"buffer_load_dwordx4 v{vD0}, {sr(sX, 4)}, 0 offen lds",
        f"s_add_u32 m0, s{sM0X}, {slot * XT + 1088}",
        f"v_cndmask_b32 v{vHOLD}, v{vREC}, v{vREC + 2}, {sr(sSEL, 2)}",
        f"buffer_load_dwordx4 v{vD1}, {sr(sX, 4)}, 0 offen lds",
        f"v_cndmask_b32 v{vHOLD + 1}, v{vREC + 1}, v{vREC + 3}, {sr(sSEL, 2)}",
    ]


def emit_slot(st, valu, after):
    for i, v in enumerate(valu):
        st.emit(v)
        for x in after.get(i, []):
            st.emit(x) if not x.endswith(":") else st.a(x)


def loop_body(a, st, ph):
    nx = (ph + 1) % 3
    st.wait_writes("vmcnt(2) ")
    a("s_barrier")
    after = {}

    def add(p, *xs):
        after.setdefault(p, []).extend(xs)

    g = g1(1, Z + 16)
    for j, p in enumerate(G1POS):
        add(p, g[j])
        if j < 8:
            add(p, xread(j, nx * XT))
        else:
            add(p, p1read(j - 8, nx))
    add(0, listread(ph))
    add(AG1POS, agg(1, 1), f"s_cmp_eq_u32 s{sT}, s{sT0}", f"s_cbranch_scc1 hookA_{ph}", f"backA_{ph}:",
        p2read(1, 0, ph), p2read(1, 1, ph))
    add(8, *pbuild((ph + 2) % 3))
    add(16, *dma_and_hold(ph))
    if ph == 2:
        add(20, f"v_add_u32 v{vLA}, 768, v{vLA}")
    add(AG0POS, agg(0, 0))
    emit_slot(st, silu_stream(Z, Z + 16), after)
    after = {}
    a(f"s_cmp_eq_u32 s{sT}, s{sT0M1}")
    a(f"s_cbranch_scc1 hookB_{ph}")
    a.label(f"backB_{ph}")
    a(f"s_cmp_eq_u32 s{sT}, s{sTNM1}")
    a(f"s_cbranch_scc1 hookC_{ph}")
    a.label(f"backC_{ph}")
    g = g1(0, Z)
    for j, p in enumerate(G1POS):
        add(p, g[j])
    add(AG1POS, agg(0, 1))
    add(AG0POS, agg(1, 0), p2read(0, 0, nx), p2read(0, 1, nx))
    emit_slot(st, silu_stream(Z + 16, Z), after)
    a(f"s_add_u32 s{sT}, s{sT}, 1")
    a(f"s_cmp_eq_u32 s{sT}, s{sTN}")
    if ph < 2:
        a("s_cbranch_scc1 loop_exit")
    else:
        a("s_cbranch_scc0 loop_top")


def flush(a, grp, region, tag):
    a("s_nop 7")
    a("s_nop 7")
    a(f"s_cmp_eq_u32 s{sROUND}, 0")
    a(f"s_cbranch_scc1 fl_noload_{tag}")
    a(f"s_add_u32 s{sA}, s{sSAVEO}, {grp * 32768}")
    for i in range(8):
        a(f"buffer_load_dwordx4 {vr(H, 4)}, v{vL16}, {sr(sWS, 4)}, s{sA} offen sc0 sc1")
        a(f"s_add_u32 s{sA}, s{sA}, 1024")
        a("s_waitcnt vmcnt(0)")
        for j in range(4):
            a(f"v_add_f32 v{S + 4 * i + j}, v{S + 4 * i + j}, v{H + j}")
    a.label(f"fl_noload_{tag}")
    a(f"s_cmp_eq_u32 s{sMORE}, 0")
    a(f"s_cbranch_scc1 fl_nosave_{tag}")
    a(f"s_add_u32 s{sA}, s{sSAVEO}, {grp * 32768}")
    for i in range(8):
        a(f"buffer_store_dwordx4 {vr(S + 4 * i, 4)}, v{vL16}, {sr(sWS, 4)}, s{sA} offen sc0 sc1")
        a(f"s_add_u32 s{sA}, s{sA}, 1024")
    a("s_waitcnt vmcnt(0)")
    a.label(f"fl_nosave_{tag}")
    for c in range(2):
        b = S + 16 * c
        for k in range(8):
            a(f"v_pk_mul_f32 {vr(b + 2 * k, 2)}, {vr(b + 2 * k, 2)}, {sr(sNLN2, 2)}")
        for k in range(8):
            a(f"v_cvt_pk_bf16_f32 v{b + k}, v{b + 2 * k}, v{b + 2 * k + 1}")
        for m in range(2):
            a(f"ds_write_b128 v{vFA}, {vr(b + 4 * m, 4)} offset:{region + (2 * c + m) * 1024}")


def bgemm(a, dst):
    for ct in range(2):
        acc = P1 + 16 * ct
        for j in range(8):
            a(mfma(acc, X + 4 * j, S + 32 * ct + 4 * j, None if j == 0 else acc))
    a("s_nop 3")
    for ct in range(2):
        acc = P1 + 16 * ct
        if ct == 1:
            pass
        for k in range(8):
            a(f"v_pk_fma_f32 {vr(acc + 2 * k, 2)}, {vr(acc + 2 * k, 2)}, {sr(sNEGL, 2)}, {vr(vB1S + 2 * ct, 2)} op_sel_hi:[1,1,0]")
        for k in range(8):
            a(f"v_cvt_pk_bf16_f32 v{dst + 8 * ct + k}, v{acc + 2 * k}, v{acc + 2 * k + 1}")
        a(f"v_cndmask_b32 v{dst + 8 * ct + 7}, v{dst + 8 * ct + 7}, v{vCPK + ct}, {sr(sHI, 2)}")


def fill_loads(a):
    a(f"v_mov_b32 v{vT3}, 0x7ffffff0")
    for g, (off, n) in enumerate(((vOFA, vNA), (vOFB, vNB))):
        for jj in range(4):
            a(f"v_cmp_lt_u32 vcc, {2 * jj}, v{n}")
            tmp = (vT0, vT1)[jj & 1]
            a("s_nop 1")
            a(f"v_cndmask_b32 v{tmp}, v{vT3}, v{off}, vcc")
            a(f"buffer_load_dwordx4 {vr(W + 32 + 16 * g + 4 * jj, 4)}, v{tmp}, {sr(sWS, 4)}, 0 offen offset:{16 * jj}")


def fill_writes(a):
    for g, (pos, tk) in enumerate(((vPOSA, vTKA), (vPOSB, vTKB))):
        for r in range(8):
            a(f"v_cmpx_lt_u32 vcc, {r}, v{tk}")
            a(f"ds_write_b64 v{pos}, {vr(W + 32 + 16 * g + 2 * r, 2)} offset:{8 * r}")
        a("s_mov_b64 exec, -1")


def gen_main(a, opt):
    teams = opt.teams
    kn = NAME + "_kernel"
    a.label(kn)
    a("s_load_dwordx2 s[4:5], s[0:1], 0")
    a("s_load_dwordx4 s[52:55], s[0:1], 32")
    a("s_load_dwordx4 s[60:63], s[0:1], 56")
    a("s_load_dwordx2 s[8:9], s[0:1], 80")
    a(f"v_and_b32 v{vTID}, 255, v0")
    a(f"v_lshrrev_b32 v{vT0}, 6, v0")
    a(f"v_and_b32 v{vLANE}, 63, v0")
    a(f"v_readfirstlane_b32 s{sW}, v{vT0}")
    if teams == 2:
        a(f"s_lshr_b32 s{sA}, s{sW}, 2")
        a(f"s_and_b32 s{sW}, s{sW}, 3")
        a(f"s_lshl_b32 s{sQ}, s2, 1")
        a(f"s_add_u32 s{sQ}, s{sQ}, s{sA}")
        a(f"s_mul_i32 s{sTB}, s{sA}, {TEAMSZ}")
    else:
        a(f"s_mov_b32 s{sQ}, s2")
        a(f"s_mov_b32 s{sTB}, 0")
    a(f"s_cmp_ge_u32 s{sQ}, {NT}")
    a("s_cbranch_scc1 main_done")
    a(f"s_mov_b32 s{sONE}, 1.0")
    a(f"s_mov_b32 s{sONE + 1}, 1.0")
    a(f"s_mov_b32 s{sNEGL}, {f32(-LOG2E)}")
    a(f"s_mov_b32 s{sNEGL + 1}, {f32(-LOG2E)}")
    a(f"s_mov_b32 s{sNLN2}, {f32(-LN2)}")
    a(f"s_mov_b32 s{sNLN2 + 1}, {f32(-LN2)}")
    a(f"s_mov_b32 s{sMPB}, 0x00030003")
    a(f"s_mov_b32 s{sMPB + 1}, 0x00030003")
    a(f"s_mov_b32 s{sSEL}, 0x00020002")
    a(f"s_mov_b32 s{sSEL + 1}, 0x00020002")
    a(f"s_mov_b32 s{sHI}, 0")
    a(f"s_mov_b32 s{sHI + 1}, -1")
    a(f"s_mov_b32 s{sFF}, 0xff")
    a(f"s_mov_b32 s{sROUND}, 0")
    a(f"s_mul_i32 s{sBASE}, s{sQ}, {TN}")
    a(f"s_mul_i32 s{sM0X}, s{sW}, {2 * 1088}")
    a(f"s_add_u32 s{sM0X}, s{sM0X}, s{sTB}")
    a(f"s_lshl_b32 s{sSAVEO}, s{sQ}, 16")
    a(f"s_lshl_b32 s{sA}, s{sW}, 13")
    a(f"s_add_u32 s{sSAVEO}, s{sSAVEO}, s{sA}")
    a(f"s_add_u32 s{sSAVEO}, s{sSAVEO}, {SAVE:#x}")
    L = vLANE
    a(f"v_and_b32 v{vT0}, 31, v{L}")
    a(f"v_lshrrev_b32 v{vT1}, 5, v{L}")
    a(f"v_lshrrev_b32 v{vT2}, 2, v{vT0}")
    a(f"v_and_b32 v{vT3}, 3, v{vT0}")
    a(f"v_mul_u32_u24 v{vXA0}, 1088, v{vT2}")
    a(f"v_lshl_add_u32 v{vXA0}, v{vT3}, 8, v{vXA0}")
    a(f"v_add_u32 v{vXA0}, s{sTB}, v{vXA0}")
    a(f"v_xor_b32 v{vD0}, v{vT1}, v{vT3}")
    a(f"v_xor_b32 v{vD1}, 2, v{vD0}")
    a(f"v_lshl_add_u32 v{vXA1}, v{vD1}, 4, v{vXA0}")
    a(f"v_lshl_add_u32 v{vXA0}, v{vD0}, 4, v{vXA0}")
    a(f"s_add_u32 s{sA}, s{sTB}, {PR}")
    a(f"v_lshlrev_b32 v{vP1A}, 6, v{vT0}")
    a(f"v_add_u32 v{vD0}, v{vT2}, v{vT1}")
    a(f"v_lshl_add_u32 v{vP1A}, v{vD0}, 4, v{vP1A}")
    a(f"v_add_u32 v{vP1A}, s{sA}, v{vP1A}")
    a(f"v_mul_u32_u24 v{vP2A}, 272, v{vT1}")
    a(f"v_bfe_u32 v{vD0}, v{L}, 2, 2")
    a(f"v_lshl_add_u32 v{vP2A}, v{vD0}, 6, v{vP2A}")
    a(f"v_bfe_u32 v{vD0}, v{L}, 4, 1")
    a(f"v_lshl_add_u32 v{vP2A}, v{vD0}, 5, v{vP2A}")
    a(f"v_lshl_add_u32 v{vP2A}, v{vT3}, 3, v{vP2A}")
    a(f"v_add_u32 v{vP2A}, s{sA}, v{vP2A}")
    a(f"v_lshrrev_b32 v{vT2}, 4, v{L}")
    a(f"v_and_b32 v{vT3}, 15, v{L}")
    a(f"v_xor_b32 v{vCO}, v{vT2}, v{vT3}")
    a(f"v_lshlrev_b32 v{vCO}, 4, v{vCO}")
    a(f"v_and_b32 v{vT3}, 1, v{L}")
    a(f"s_mul_i32 s{sB}, s{sW}, {8 * 64 + 2 * 16}")
    a(f"s_add_u32 s{sA}, s{sA}, s{sB}")
    a(f"v_mul_u32_u24 v{vPW}, {4 * 64 + 16}, v{vT3}")
    a(f"v_lshl_add_u32 v{vPW}, v{vT2}, 6, v{vPW}")
    a(f"v_add_u32 v{vPW}, s{sA}, v{vPW}")
    a(f"v_mov_b32 v{vONE}, 0x3f80")
    a(f"v_mov_b32 v{vZERO}, 0")
    a(f"v_lshlrev_b32 v{vL16}, 4, v{L}")
    a(f"s_lshl_b32 s{sA}, s{sW}, 12")
    a(f"s_add_u32 s{sA}, s{sA}, s{sTB}")
    a(f"v_add_u32 v{vFA}, s{sA}, v{vL16}")
    a(f"v_mul_u32_u24 v{vCHB}, {CH * 8}, v{vTID}")
    a("s_waitcnt lgkmcnt(0)")
    srd(a, sX, 4, 5, N * 256)
    srd(a, sWS, 8, 9, WS_BYTES)
    srd(a, sOUT, 62, 63, N * 256)
    a(f"s_mov_b32 s{sB2P}, s60")
    a(f"s_mov_b32 s{sB2P + 1}, s61")
    a(f"v_mul_u32_u24 v{vT0}, {TABSTR}, v{vTID}")
    a(f"s_lshl_b32 s{sA}, s{sQ}, 2")
    a(f"s_add_u32 s{sA}, s{sA}, {TAB:#x}")
    a(f"buffer_load_dwordx2 {vr(vCURA, 2)}, v{vT0}, {sr(sWS, 4)}, s{sA} offen")
    a(f"v_lshlrev_b32 v{vT0}, 2, v{vLANE}")
    a(f"v_add_u32 v{vT0}, s{sTB}, v{vT0}")
    a(f"ds_write_b32 v{vT0}, v{vZERO} offset:{CN}")
    a.label("round_top")
    a(f"v_lshlrev_b32 v{vT0}, 4, v{vTID}")
    a(f"v_add_u32 v{vT0}, s{sTB}, v{vT0}")
    for i in range(4):
        a(f"v_mov_b32 v{T + i}, 0")
    a(f"v_mov_b32 v{T + 4}, {PADREC:#x}")
    a(f"v_mov_b32 v{T + 5}, 0")
    a(f"v_mov_b32 v{T + 6}, {PADREC:#x}")
    a(f"v_mov_b32 v{T + 7}, 0")
    a(f"ds_write_b128 v{vT0}, {vr(T, 4)} offset:{PR}")
    a(f"ds_write_b128 v{vT0}, {vr(T + 4, 4)} offset:{LA}")
    a(f"ds_write_b128 v{vT0}, {vr(T + 4, 4)} offset:{LA + 4096}")
    a(f"v_cmpx_gt_u32 vcc, {(3 * PT - 4096) // 16}, v{vTID}")
    a(f"ds_write_b128 v{vT0}, {vr(T, 4)} offset:{PR + 4096}")
    a(f"v_cmpx_gt_u32 vcc, {(LSZ - 8192) // 16}, v{vTID}")
    a(f"ds_write_b128 v{vT0}, {vr(T + 4, 4)} offset:{LA + 8192}")
    a(f"v_cmpx_gt_u32 vcc, 1, v{vTID}")
    a(f"ds_write_b64 v{vT0}, {vr(T, 2)} offset:{RS}")
    a("s_mov_b64 exec, -1")
    for i in range(3):
        a(f"v_mov_b32 v{vOLD + i}, v{vPW}")
    a(f"v_lshrrev_b32 v{vT2}, 4, v{vLANE}")
    a(f"s_lshl_b32 s{sA}, s{sW}, 6")
    a(f"s_add_u32 s{sA}, s{sA}, s{sTB}")
    a(f"s_add_u32 s{sA}, s{sA}, {LA}")
    a(f"v_lshlrev_b32 v{vLA}, 3, v{vT2}")
    a(f"v_add_u32 v{vLA}, s{sA}, v{vLA}")
    a(f"s_lshr_b32 s{sA}, s{sW}, 1")
    a(f"s_lshl_b32 s{sA}, s{sA}, 4")
    a(f"s_and_b32 s{sB}, s{sW}, 1")
    a(f"s_lshl_b32 s{sB}, s{sB}, 2")
    a(f"s_add_u32 s{sA}, s{sA}, s{sB}")
    a(f"s_add_u32 s{sA}, s{sA}, s{sBASE}")
    a(f"v_add_u32 v{vT2}, s{sA}, v{vT2}")
    a(f"v_lshl_add_u32 v{vT2}, v{vT2}, 8, v{vCO}")
    for g in range(2):
        for ii in range(2):
            a(f"s_mov_b32 s{sA}, {(GA * g + 8 * ii) * 256}")
            a(f"s_add_u32 m0, s{sM0X}, {ST + g * XT + ii * 1088}")
            a("s_nop 0")
            a(f"buffer_load_dwordx4 v{vT2}, {sr(sX, 4)}, s{sA} offen lds")
    a(f"s_lshl_b32 s{sB}, s{sW}, 14")
    a(f"s_add_u32 s{sB}, s{sB}, {WFR:#x}")
    for k in range(16):
        if k % 4 == 0:
            a(f"s_add_u32 s{sA}, s{sB}, {65536 + k * 1024}")
        a(f"buffer_load_dwordx4 {vr(S + 4 * k, 4)}, v{vL16}, {sr(sWS, 4)}, s{sA} offen offset:{(k % 4) * 1024}")
    a(f"v_and_b32 v{vT0}, 31, v{vLANE}")
    a(f"s_lshl_b32 s{sA}, s{sW}, 7")
    a(f"v_lshl_add_u32 v{vT0}, v{vT0}, 1, s{sA}")
    srd(a, sTMP, sB1P, sB1P + 1, 512)
    a(f"buffer_load_ushort v{vB1S}, v{vT0}, {sr(sTMP, 4)}, 0 offen")
    a(f"buffer_load_ushort v{vB1S + 2}, v{vT0}, {sr(sTMP, 4)}, 0 offen offset:64")
    srd(a, 64, sW1P, sW1P + 1, 257 * 512)
    a(f"s_mov_b32 s{sA}, {256 * 512}")
    a(f"buffer_load_ushort v{vCPK}, v{vT0}, s[64:67], s{sA} offen")
    a(f"buffer_load_ushort v{vCPK + 1}, v{vT0}, s[64:67], s{sA} offen offset:64")
    a("s_waitcnt lgkmcnt(0)")
    a("s_barrier")
    a(f"s_cmp_lg_u32 s{sROUND}, 0")
    a("s_cbranch_scc1 have_table")
    a("s_waitcnt vmcnt(24)")
    a(f"v_lshrrev_b32 v{vCURB}, 16, v{vCURA}")
    a(f"v_and_b32 v{vREMB}, 0xffff, v{vREMA}")
    a(f"v_and_b32 v{vCURA}, 0xffff, v{vCURA}")
    a(f"v_cmp_gt_u32 vcc, {NCH}, v{vTID}")
    a(f"v_sub_u32 v{vREMB}, v{vREMB}, v{vCURB}")
    a(f"v_sub_u32 v{vREMA}, v{vCURB}, v{vCURA}")
    a(f"v_cndmask_b32 v{vREMB}, 0, v{vREMB}, vcc")
    a(f"v_cndmask_b32 v{vREMA}, 0, v{vREMA}, vcc")
    a.label("have_table")
    a(f"v_lshl_add_u32 v{vOFA}, v{vCURA}, 3, v{vCHB}")
    a(f"v_lshl_add_u32 v{vOFB}, v{vCURB}, 3, v{vCHB}")
    a(f"v_mov_b32 v{vNA}, v{vREMA}")
    a(f"v_mov_b32 v{vNB}, v{vREMB}")
    a(f"v_mov_b32 v{vT2}, s{sTB}")
    a(f"ds_add_rtn_u32 v{vPOSA}, v{vT2}, v{vREMA} offset:{RS}")
    a(f"ds_add_rtn_u32 v{vPOSB}, v{vT2}, v{vREMB} offset:{RS + 4}")
    fill_loads(a)
    for k in range(8):
        if k % 4 == 0:
            a(f"s_add_u32 s{sA}, s{sB}, {k * 1024}")
        a(f"buffer_load_dwordx4 {vr(W + 4 * k, 4)}, v{vL16}, {sr(sWS, 4)}, s{sA} offen offset:{(k % 4) * 1024}")
    a("s_waitcnt vmcnt(16) lgkmcnt(0)")
    a("s_barrier")
    a(f"ds_read_b64 {vr(vD0, 2)}, v{vT2} offset:{RS}")
    for j in range(8):
        a(xread(j, ST))
    for ct in range(2):
        b, cp = vB1S + 2 * ct, vCPK + ct
        a(f"v_lshlrev_b32 v{b}, 16, v{b}")
        a(f"v_mul_f32 v{b}, s{sNEGL}, v{b}")
        a(f"v_lshlrev_b32 v{cp}, 16, v{cp}")
        a(f"v_mul_f32 v{cp}, s{sNEGL}, v{cp}")
        a(f"v_cvt_pk_bf16_f32 v{vT0}, v{cp}, v{cp}")
        a(f"v_lshlrev_b32 v{vT0}, 16, v{vT0}")
        a(f"v_sub_f32 v{cp}, v{cp}, v{vT0}")
        a(f"v_cvt_pk_bf16_f32 v{cp}, v{vT0}, v{cp}")
    a(f"v_mov_b32 v{vT0}, {CAP}")
    a(f"v_sub_u32 v{vTKA}, v{vT0}, v{vPOSA} clamp")
    a(f"v_sub_u32 v{vTKB}, v{vT0}, v{vPOSB} clamp")
    a(f"v_min_u32 v{vTKA}, v{vTKA}, v{vREMA}")
    a(f"v_min_u32 v{vTKB}, v{vTKB}, v{vREMB}")
    a(f"v_add_u32 v{vCURA}, v{vCURA}, v{vTKA}")
    a(f"v_add_u32 v{vCURB}, v{vCURB}, v{vTKB}")
    a(f"v_sub_u32 v{vREMA}, v{vREMA}, v{vTKA}")
    a(f"v_sub_u32 v{vREMB}, v{vREMB}, v{vTKB}")
    a("s_waitcnt lgkmcnt(8)")
    a(f"v_readfirstlane_b32 s{sC}, v{vD0}")
    a(f"v_readfirstlane_b32 s{sD}, v{vD1}")
    a(f"s_max_u32 s{sA}, s{sC}, s{sD}")
    a(f"s_cmp_gt_u32 s{sA}, {CAP}")
    a(f"s_cselect_b32 s{sMORE}, 1, 0")
    a(f"s_min_u32 s{sC}, s{sC}, {CAP}")
    a(f"s_min_u32 s{sD}, s{sD}, {CAP}")
    a(f"s_add_u32 s{sC}, s{sC}, 31")
    a(f"s_add_u32 s{sD}, s{sD}, 31")
    a(f"s_lshr_b32 s{sC}, s{sC}, 5")
    a(f"s_lshr_b32 s{sD}, s{sD}, 5")
    a(f"s_max_u32 s{sT0}, s{sC}, 1")
    a(f"s_max_u32 s{sD}, s{sD}, 1")
    a(f"s_add_u32 s{sTN}, s{sT0}, s{sD}")
    a(f"s_sub_u32 s{sT0M1}, s{sT0}, 1")
    a(f"s_sub_u32 s{sTNM1}, s{sTN}, 1")
    a(f"s_mov_b32 s{sT}, 0")
    a(f"s_add_u32 s{sA}, s{sTB}, {LA}")
    a(f"v_lshl_add_u32 v{vPOSA}, v{vPOSA}, 3, s{sA}")
    a(f"s_lshl_b32 s{sC}, s{sT0}, 8")
    a(f"s_add_u32 s{sA}, s{sA}, s{sC}")
    a(f"v_lshl_add_u32 v{vPOSB}, v{vPOSB}, 3, s{sA}")
    a("s_waitcnt lgkmcnt(0)")
    bgemm(a, BT)
    for j in range(8):
        a(xread(j, ST + XT))
    a("s_waitcnt vmcnt(8)")
    a.label("fill_loop")
    fill_writes(a)
    a(f"v_max_u32 v{vT0}, v{vTKA}, v{vTKB}")
    a(f"v_cmp_lt_u32 vcc, 8, v{vT0}")
    a("s_cbranch_vccz fill_done")
    for r in (vTKA, vTKB, vNA, vNB):
        a(f"v_subrev_u32 v{r}, 8, v{r} clamp")
    for r in (vPOSA, vPOSB, vOFA, vOFB):
        a(f"v_add_u32 v{r}, 64, v{r}")
    a("s_waitcnt lgkmcnt(0)")
    fill_loads(a)
    a("s_waitcnt vmcnt(0)")
    a("s_branch fill_loop")
    a.label("fill_done")
    a("s_waitcnt lgkmcnt(0)")
    a("s_barrier")
    for k in range(8, 16):
        if k % 4 == 0:
            a(f"s_add_u32 s{sA}, s{sB}, {k * 1024}")
        a(f"buffer_load_dwordx4 {vr(W + 4 * k, 4)}, v{vL16}, {sr(sWS, 4)}, s{sA} offen offset:{(k % 4) * 1024}")
    for t in range(3):
        a(listread(t))
        a("s_waitcnt lgkmcnt(0)")
        for x in dma_and_hold(t):
            a(x)
        if t < 2:
            for x in pbuild(t):
                a(x)
    a(f"v_add_u32 v{vLA}, 768, v{vLA}")
    bgemm(a, X)
    for i in range(4):
        a(f"ds_write_b128 v{vFA}, {vr(X + 4 * i, 4)} offset:{ST + i * 1024}")
    a(f"v_lshlrev_b32 v{vT0}, 3, v{vTID}")
    a(f"v_add_u32 v{vT0}, s{sTB}, v{vT0}")
    for k in range(4):
        a(f"ds_read_b32 v{T + k}, v{vT0} offset:{LA + k * 2048}")
    a(f"s_lshl_b32 s{sC}, s{sT0}, 5")
    a(f"s_add_u32 s{sA}, s{sTB}, {CN}")
    a(f"v_mov_b32 v{vT0}, s{sA}")
    a(f"v_add_u32 v{vT1}, 128, v{vT0}")
    a(f"v_mov_b32 v{vT3}, 1")
    for k in range(4):
        a(f"v_add_u32 v{vT2}, {k * 256}, v{vTID}")
        a(f"v_cmp_le_u32 vcc, s{sC}, v{vT2}")
        a(f"s_waitcnt lgkmcnt({3 - k if k == 0 else 3})")
        a(f"v_and_b32 v{T + k}, 0x3e, v{T + k}")
        a(f"v_cndmask_b32 v{vT2}, v{vT0}, v{vT1}, vcc")
        a(f"v_lshl_add_u32 v{vT2}, v{T + k}, 1, v{vT2}")
        a(f"ds_add_u32 v{vT2}, v{vT3}")
    for i in range(32):
        a(f"v_mov_b32 v{S + i}, 0")
    for i in range(16):
        a(f"v_mov_b32 v{Z + 16 + i}, 0")
    for i in range(8):
        a(f"v_mov_b32 v{H + i}, 0")
        a(f"v_mov_b32 v{P2 + i}, 0")
    for i in range(4):
        a(f"v_mov_b32 v{T + i}, 0")
    a("s_waitcnt vmcnt(4) lgkmcnt(0)")
    a("s_barrier")
    for j in range(8):
        a(xread(j, 0))
    a(p1read(0, 0))
    a(p1read(1, 0))
    a(p2read(0, 0, 0))
    a(p2read(0, 1, 0))
    a("s_waitcnt lgkmcnt(0)")
    for x in g1(0, Z):
        a(x)
    a("s_nop 7")
    a("s_nop 3")
    dummy = Asm()
    st = Stream(dummy)
    for ph in range(3):
        loop_body(dummy, st, ph)
    st.a = a
    start = [set(p) for p in st.pend]
    a.label("loop_top")
    for ph in range(3):
        loop_body(a, st, ph)
    assert [set(p) for p in st.pend] == start
    a.label("loop_exit")
    tp = T + 2
    a(f"v_pk_mul_f32 {vr(tp, 2)}, {vr(Z + 30, 2)}, {vr(tp, 2)}")
    a(f"v_cvt_pk_bf16_f32 v{H + 7}, v{tp}, v{tp + 1}")
    a("s_waitcnt vmcnt(0) lgkmcnt(0)")
    a("s_barrier")
    a(agg(1, 1))
    flush(a, 1, XR, "end")
    a(f"s_cmp_eq_u32 s{sMORE}, 0")
    a("s_cbranch_scc1 last_round")
    a(f"s_add_u32 s{sROUND}, s{sROUND}, 1")
    a("s_waitcnt lgkmcnt(0)")
    a("s_barrier")
    a("s_branch round_top")
    a.label("last_round")
    srd(a, sTMP, sB2P, sB2P + 1, 256)
    a(f"v_lshrrev_b32 v{vT1}, 5, v{vLANE}")
    a(f"s_lshl_b32 s{sA}, s{sW}, 6")
    a(f"v_lshl_add_u32 v{vT1}, v{vT1}, 5, s{sA}")
    a(f"buffer_load_dwordx4 {vr(P1, 4)}, v{vT1}, {sr(sTMP, 4)}, 0 offen")
    a(f"buffer_load_dwordx4 {vr(P1 + 4, 4)}, v{vT1}, {sr(sTMP, 4)}, 0 offen offset:16")
    a(f"v_and_b32 v{vT0}, 31, v{vLANE}")
    a(f"v_lshl_add_u32 v{vT2}, v{vT0}, 2, s{sTB}")
    a(f"v_add_u32 v{vT3}, s{sTB}, v{vL16}")
    a("s_waitcnt lgkmcnt(0)")
    a("s_barrier")
    a(f"ds_read_b32 v{T}, v{vT2} offset:{CN}")
    a(f"ds_read_b32 v{T + 1}, v{vT2} offset:{CN + 128}")

    def sfr(f):
        return (X + 4 * f) if f < 8 else (Z + 4 * (f - 8))

    for f in range(13):
        a(f"ds_read_b128 {vr(sfr(f), 4)}, v{vT3} offset:{ST + f * 1024}")
    a("s_waitcnt vmcnt(0)")
    for k in range(8):
        a(f"v_lshlrev_b32 v{BT + 2 * k}, 16, v{P1 + k}")
        a(f"v_and_b32 v{BT + 2 * k + 1}, 0xffff0000, v{P1 + k}")
    a("s_waitcnt lgkmcnt(13)")
    for f in range(13, 16):
        a(f"ds_read_b128 {vr(sfr(f), 4)}, v{vT3} offset:{ST + f * 1024}")
    a(f"v_cvt_f32_u32 v{T}, v{T}")
    a(f"v_cvt_f32_u32 v{T + 1}, v{T + 1}")
    for g in range(2):
        for k in range(16):
            a(f"v_mul_f32 v{S + 16 * g + k}, v{T + g}, v{BT + k}")
    a(f"v_add_u32 v{vT2}, s{sBASE}, v{vT0}")
    a(f"v_lshl_add_u32 v{vT2}, v{vT2}, 8, v{vT1}")
    for f in range(16):
        a(f"s_waitcnt lgkmcnt({15 if f else 15})" if f == 0 else "s_waitcnt lgkmcnt(15)")
        a(mfma(S, W + 4 * f, sfr(f), S))
        a(f"ds_read_b128 {vr(sfr(f), 4)}, v{vT3} offset:{XR + f * 1024}")
    for f in range(16):
        a(f"s_waitcnt lgkmcnt({15 - f})")
        a(mfma(S + 16, W + 4 * f, sfr(f), S + 16))
    for g in range(2):
        b = S + 16 * g
        if g == 1:
            a("s_nop 7")
            a("s_nop 3")
        for k in range(8):
            a(f"v_cvt_pk_bf16_f32 v{BT + 8 * g + k}, v{b + 2 * k}, v{b + 2 * k + 1}")
        a(f"v_cmpx_gt_u32 vcc, {GA if g == 0 else TN - GA}, v{vT0}")
        a(f"s_mov_b32 s{sA}, {GA * g * 256}")
        a(f"buffer_store_dwordx4 {vr(BT + 8 * g, 4)}, v{vT2}, {sr(sOUT, 4)}, s{sA} offen")
        a(f"buffer_store_dwordx4 {vr(BT + 8 * g + 4, 4)}, v{vT2}, {sr(sOUT, 4)}, s{sA} offen offset:16")
        a("s_mov_b64 exec, -1")
    a.label("main_done")
    a("s_endpgm")
    for ph in range(3):
        a.label(f"hookA_{ph}")
        flush(a, 0, ST, f"a{ph}")
        a("s_waitcnt lgkmcnt(0)")
        for i in range(32):
            a(f"v_mov_b32 v{S + i}, 0")
        a(f"s_branch backA_{ph}")
        a.label(f"hookB_{ph}")
        for i in range(4):
            a(f"ds_read_b128 {vr(BT + 4 * i, 4)}, v{vFA} offset:{ST + i * 1024}")
        a("s_waitcnt lgkmcnt(0)")
        a(f"s_branch backB_{ph}")
        a.label(f"hookC_{ph}")
        a(f"s_lshl_b32 s{sB}, s{sW}, 14")
        a(f"s_add_u32 s{sB}, s{sB}, {WFR + 131072:#x}")
        for k in range(16):
            if k % 4 == 0:
                a(f"s_add_u32 s{sA}, s{sB}, {k * 1024}")
            a(f"buffer_load_dwordx4 {vr(W + 4 * k, 4)}, v{vL16}, {sr(sWS, 4)}, s{sA} offen offset:{(k % 4) * 1024}")
        a(f"s_branch backC_{ph}")
    grid = NT if teams == 1 else (NT + 1) // 2
    return dict(vgpr=256, sgpr=72, lds=TEAMSZ * teams, grid=grid, block=256 * teams)


HEADER = """; Kernarg layout for this problem (88 bytes, ptrs only, base s[0:1]):
"""


def kd(name, info):
    acc = (info["vgpr"] + 3) // 4 * 4
    return f""".amdhsa_kernel {name}
  .amdhsa_next_free_vgpr {info['vgpr']}
  .amdhsa_next_free_sgpr {info['sgpr']}
  .amdhsa_accum_offset {acc}
  .amdhsa_group_segment_fixed_size 0
  .amdhsa_kernarg_size 88
  .amdhsa_user_sgpr_count 2
  .amdhsa_user_sgpr_kernarg_segment_ptr 1
  .amdhsa_system_sgpr_workgroup_id_x 1
.end_amdhsa_kernel
"""


def build(opt):
    b, m = Asm(), Asm()
    ib = gen_bin(b, opt)
    im = gen_main(m, opt)
    kn = NAME + "_kernel"
    out = HEADER
    out += f"; @launch kernel=bin_kernel grid=({ib['grid']},1,1) block=({ib['block']},1,1) lds={ib['lds']}\n"
    out += f"; @launch kernel={kn} grid=({im['grid']},1,1) block=({im['block']},1,1) lds={im['lds']}\n"
    out += '.amdgcn_target "amdgcn-amd-amdhsa--gfx950"\n.text\n'
    out += ".globl bin_kernel\n.p2align 8\n.type bin_kernel,@function\n" + b.text()
    out += f".globl {kn}\n.p2align 8\n.type {kn},@function\n" + m.text()
    out += '.section .rodata,"a"\n.p2align 6\n' + kd("bin_kernel", ib) + ".p2align 6\n" + kd(kn, im)
    return out


if __name__ == "__main__":
    ap = argparse.ArgumentParser()
    ap.add_argument("-o", default=f"cdna_kernels/{NAME}.s")
    ap.add_argument("--teams", type=int, default=1)
    opt = ap.parse_args()
    txt = build(opt)
    open(opt.o, "w").write(txt)
    sys.path.insert(0, "gen")
    import asmcheck
    r = asmcheck.check(txt)
    for x in r:
        print(x)
    print(len(r), "findings;", len(txt.splitlines()), "lines; team LDS", TEAMSZ)
```

```python
import argparse
import re
import struct
import sys

NAME = "gather_scatter__edge_featured_mpnn_mpnn__graph"
N, E = 25000, 400000
NCH, CH = 250, 1600
NT, TN, GA = 511, 49, 25
REC, TAB, TABSTR, WFR, SAVE = 0, 0x320000, 2176, 0x3C0000, 0x400000
WS_BYTES = 0x10000000
NPREP = 24
LOG2E = 1.4426950408889634
LN2 = 0.6931471805599453


def f32(x):
    return "0x%08x" % struct.unpack("<I", struct.pack("<f", x))[0]


def vr(a, n=1):
    return f"v{a}" if n == 1 else f"v[{a}:{a + n - 1}]"


def sr(a, n=1):
    return f"s{a}" if n == 1 else f"s[{a}:{a + n - 1}]"


class Asm:
    def __init__(self):
        self.l = []

    def __call__(self, s):
        for x in s.strip("\n").split("\n"):
            x = x.strip()
            if x:
                self.l.append(x if x.endswith(":") else "    " + x)

    def label(self, s):
        self.l.append(s + ":")

    def c(self, s):
        self.l.append("    ; " + s)

    def text(self):
        return "\n".join(self.l) + "\n"


def srd(a, s, base_lo, base_hi, nbytes):
    a(f"s_mov_b32 s{s}, s{base_lo}")
    a(f"s_and_b32 s{s + 1}, s{base_hi}, 0xffff")
    a(f"s_mov_b32 s{s + 2}, {nbytes:#x}")
    a(f"s_mov_b32 s{s + 3}, 0x20000")


def gen_bin(a, opt):
    HIST, WOFF, STG = 0, 4096, 4160
    a.label("bin_kernel")
    a(f"s_cmp_ge_u32 s2, {NCH + NPREP}")
    a("s_cbranch_scc1 bin_done")
    a(f"s_cmp_ge_u32 s2, {NCH}")
    a("s_cbranch_scc1 bin_prep")
    a("s_load_dwordx4 s[4:7], s[0:1], 8")
    a("s_load_dwordx2 s[8:9], s[0:1], 24")
    a("s_load_dwordx2 s[10:11], s[0:1], 80")
    a("v_lshlrev_b32 v1, 3, v0")
    a("v_mov_b32 v2, 0")
    a("v_mov_b32 v3, 0")
    a(f"ds_write_b64 v1, v[2:3] offset:{HIST}")
    a("v_cmp_gt_u32 vcc, 8, v0")
    a("s_and_saveexec_b64 s[36:37], vcc")
    a("v_lshlrev_b32 v4, 2, v0")
    a(f"ds_write_b32 v4, v2 offset:{WOFF}")
    a("s_mov_b64 exec, s[36:37]")
    a("v_lshlrev_b32 v4, 4, v0")
    a("s_mul_i32 s28, s2, 6400")
    a("s_mul_i32 s29, s2, 3200")
    a("s_waitcnt lgkmcnt(0)")
    srd(a, 12, 8, 9, E * 4)
    srd(a, 16, 6, 7, E * 4)
    srd(a, 20, 4, 5, E * 2)
    srd(a, 24, 10, 11, WS_BYTES)
    a("buffer_load_dwordx4 v[8:11], v4, s[12:15], s28 offen")
    a("buffer_load_dwordx4 v[12:15], v4, s[16:19], s28 offen")
    a("buffer_load_dwordx2 v[16:17], v1, s[20:23], s29 offen")
    a("s_barrier")
    a(f"v_cmp_gt_u32 vcc, {CH // 4}, v0")
    a("s_and_saveexec_b64 s[36:37], vcc")
    a("s_mov_b64 s[38:39], exec")
    a("v_mov_b32 v5, 1")
    a("s_waitcnt vmcnt(2)")
    for i in range(4):
        d, g, dl = 8 + i, 20 + i, 24 + i
        a(f"v_mul_u32_u24 v{g}, 21400, v{d}")
        a(f"v_lshrrev_b32 v{g}, 20, v{g}")
        a(f"v_mul_u32_u24 v{dl}, {TN}, v{g}")
        a(f"v_sub_u32 v{dl}, v{d}, v{dl}")
        a(f"v_cmp_le_u32 vcc, {GA}, v{dl}")
        a(f"v_lshlrev_b32 v{g}, 3, v{g}")
        a(f"v_subrev_u32 v6, {GA}, v{dl}")
        a(f"v_cndmask_b32 v{dl}, v{dl}, v6, vcc")
        a(f"v_add_u32 v6, 4, v{g}")
        a(f"v_cndmask_b32 v{g}, v{g}, v6, vcc")
        a(f"ds_add_rtn_u32 v{28 + i}, v{g}, v5 offset:{HIST}")
    a("s_waitcnt vmcnt(0)")
    a("s_mov_b32 s30, 0x01000100")
    a("s_mov_b32 s31, 0x03020302")
    for i in range(4):
        a(f"v_lshlrev_b32 v{24 + i}, 1, v{24 + i}")
        a(f"v_lshl_or_b32 v{32 + 2 * i}, v{12 + i}, 8, v{24 + i}")
        a(f"v_perm_b32 v{33 + 2 * i}, v{16 + i // 2}, v{16 + i // 2}, s{30 + i % 2}")
    a("s_mov_b64 exec, s[36:37]")
    a("s_waitcnt lgkmcnt(0)")
    a("s_barrier")
    a(f"ds_read_b64 v[40:41], v1 offset:{HIST}")
    a("v_lshrrev_b32 v7, 6, v0")
    a("v_and_b32 v6, 63, v0")
    a("s_waitcnt lgkmcnt(0)")
    a("v_add_u32 v42, v40, v41")
    a("v_mov_b32 v43, v42")
    for sh in (1, 2, 4, 8):
        a("s_nop 1")
        a(f"v_add_u32_dpp v43, v43, v43 row_shr:{sh} row_mask:0xf bank_mask:0xf")
    a("s_nop 1")
    a("v_add_u32_dpp v43, v43, v43 row_bcast:15 row_mask:0xa bank_mask:0xf")
    a("s_nop 1")
    a("v_add_u32_dpp v43, v43, v43 row_bcast:31 row_mask:0xc bank_mask:0xf")
    a("s_nop 0")
    a("v_readlane_b32 s32, v43, 63")
    a("v_cmp_lt_u32 vcc, v7, v6")
    a("v_cmp_gt_u32 s[34:35], 8, v6")
    a("v_lshlrev_b32 v44, 2, v6")
    a("v_mov_b32 v45, s32")
    a("s_and_b64 exec, vcc, s[34:35]")
    a(f"ds_add_u32 v44, v45 offset:{WOFF}")
    a("s_mov_b64 exec, s[36:37]")
    a("v_lshlrev_b32 v44, 2, v7")
    a("v_sub_u32 v43, v43, v42")
    a("s_waitcnt lgkmcnt(0)")
    a("s_barrier")
    a(f"ds_read_b32 v44, v44 offset:{WOFF}")
    a(f"s_mul_i32 s28, s2, {TABSTR}")
    a(f"s_add_u32 s28, s28, {TAB:#x}")
    a("v_lshlrev_b32 v46, 2, v0")
    a("s_waitcnt lgkmcnt(0)")
    a("v_add_u32 v42, v43, v44")
    a("v_add_u32 v43, v42, v40")
    a(f"ds_write_b64 v1, v[42:43] offset:{HIST}")
    a("v_lshl_or_b32 v44, v43, 16, v42")
    a("buffer_store_dword v44, v46, s[24:27], s28 offen")
    a("s_waitcnt lgkmcnt(0)")
    a("s_barrier")
    a("s_mov_b64 exec, s[38:39]")
    for i in range(4):
        a(f"ds_read_b32 v{20 + i}, v{20 + i} offset:{HIST}")
    for i in range(4):
        a(f"s_waitcnt lgkmcnt({3 - i if i == 0 else 3})")
        a(f"v_add_lshl_u32 v{20 + i}, v{20 + i}, v{28 + i}, 3")
        a(f"ds_write_b64 v{20 + i}, v[{32 + 2 * i}:{33 + 2 * i}] offset:{STG}")
    a("s_mov_b64 exec, s[36:37]")
    a(f"s_mul_i32 s28, s2, {CH * 8}")
    a("s_waitcnt lgkmcnt(0)")
    a("s_barrier")
    a(f"ds_read_b128 v[8:11], v4 offset:{STG}")
    a(f"v_cmp_gt_u32 vcc, {CH * 8 // 16 - 512}, v0")
    a("v_add_u32 v5, 8192, v4")
    a("s_waitcnt lgkmcnt(0)")
    a("buffer_store_dwordx4 v[8:11], v4, s[24:27], s28 offen")
    a("s_and_b64 exec, exec, vcc")
    a("s_cbranch_execz bin_done")
    a(f"ds_read_b128 v[12:15], v5 offset:{STG}")
    a("s_waitcnt lgkmcnt(0)")
    a("buffer_store_dwordx4 v[12:15], v5, s[24:27], s28 offen")
    a.label("bin_done")
    a("s_endpgm")

    a.label("bin_prep")
    a("s_load_dwordx2 s[4:5], s[0:1], 32")
    a("s_load_dwordx2 s[6:7], s[0:1], 48")
    a("s_load_dwordx2 s[10:11], s[0:1], 80")
    a(f"s_sub_u32 s28, s2, {NCH}")
    a("s_lshr_b32 s29, s28, 3")
    a("s_and_b32 s30, s28, 7")
    a("v_lshrrev_b32 v1, 6, v0")
    a("s_lshl_b32 s31, s30, 3")
    a("v_add_u32 v1, s31, v1")
    a("v_and_b32 v2, 31, v0")
    a("v_bfe_u32 v3, v0, 5, 1")
    a("s_lshl_b32 s33, s28, 13")
    a(f"s_add_u32 s33, s33, {WFR:#x}")
    a("v_lshlrev_b32 v4, 4, v0")
    a("s_cmp_eq_u32 s29, 0")
    a(f"s_cselect_b32 s32, {f32(-LOG2E)}, 1.0")
    a("s_waitcnt lgkmcnt(0)")
    srd(a, 24, 10, 11, WS_BYTES)
    a("s_cmp_eq_u32 s29, 2")
    a("s_cbranch_scc1 bin_prep_w2")
    srd(a, 12, 4, 5, 257 * 512)
    a("v_and_b32 v5, 7, v1")
    a("v_lshlrev_b32 v5, 13, v5")
    a("v_lshl_add_u32 v5, v3, 12, v5")
    a("v_lshrrev_b32 v6, 3, v1")
    a("v_lshl_add_u32 v5, v6, 6, v5")
    a("v_lshl_add_u32 v5, v2, 1, v5")
    a("s_lshl_b32 s34, s29, 16")
    for t in range(8):
        a(f"buffer_load_ushort v{8 + t}, v5, s[12:15], s34 offen offset:{t * 512}")
    a("s_branch bin_prep_cvt")
    a.label("bin_prep_w2")
    srd(a, 12, 6, 7, 256 * 256)
    a("v_and_b32 v5, 15, v1")
    a("v_lshlrev_b32 v5, 12, v5")
    a("v_lshl_add_u32 v5, v3, 10, v5")
    a("v_lshrrev_b32 v6, 4, v1")
    a("v_lshl_add_u32 v5, v6, 6, v5")
    a("v_bfe_u32 v6, v2, 2, 1")
    a("v_lshl_add_u32 v5, v6, 5, v5")
    a("v_lshrrev_b32 v6, 3, v2")
    a("v_lshl_add_u32 v5, v6, 3, v5")
    a("v_and_b32 v6, 3, v2")
    a("v_lshl_add_u32 v5, v6, 1, v5")
    for t in range(8):
        a(f"buffer_load_ushort v{8 + t}, v5, s[12:15], 0 offen offset:{(t if t < 4 else t + 4) * 256}")
    a.label("bin_prep_cvt")
    a("s_waitcnt vmcnt(0)")
    for t in range(8):
        a(f"v_lshlrev_b32 v{8 + t}, 16, v{8 + t}")
        a(f"v_mul_f32 v{8 + t}, s32, v{8 + t}")
    for t in range(4):
        a(f"v_cvt_pk_bf16_f32 v{16 + t}, v{8 + 2 * t}, v{9 + 2 * t}")
    a("buffer_store_dwordx4 v[16:19], v4, s[24:27], s33 offen")
    a("s_endpgm")
    return dict(vgpr=48, sgpr=48, lds=STG + CH * 8, grid=NCH + NPREP, block=512)


XT, PT = 8704, 2176
XR = 0
PR = XR + 3 * XT
ST = PR + 3 * PT
LA = ST + 2 * XT
CAP = 512
LSZ = (2 * CAP + 96) * 8
CN = LA + LSZ
RS = CN + 256
TEAMSZ = (RS + 8 + 127) // 128 * 128
PADREC = 0x7FFFFF00 | (29 << 1)

W, S, Z, X, BT, P1, P2, H, T = 0, 64, 96, 128, 160, 176, 184, 192, 200
vXA0, vXA1, vP1A, vP2A, vCO, vLA, vPW = 208, 209, 210, 211, 212, 213, 214
vOLD = 215
vONE, vZERO = 218, 219
vREC = 220
vHOLD = 224
vD0, vD1 = 226, 227
vCURA, vREMA, vCURB, vREMB = 228, 229, 230, 231
vPOSA, vPOSB, vTKA, vTKB = 232, 233, 234, 235
vTID, vLANE, vL16, vFA, vCHB = 236, 237, 238, 239, 240
vB1S = 242
vCPK = 246
vOFA, vOFB, vNA, vNB = 248, 249, 250, 251
vT0, vT1, vT2, vT3 = 252, 253, 254, 255
sX, sWS, sOUT, sTMP = 4, 8, 12, 16
sQ, sTB, sW, sM0X, sT, sT0, sT0M1, sTN, sTNM1, sROUND, sMORE, sBASE = range(20, 32)
sONE, sNEGL, sNLN2, sMPB, sSEL, sHI, sSAVE = 32, 34, 36, 38, 40, 42, 44
sFF, sA, sB, sC, sD, sE = 46, 47, 48, 49, 50, 51
sW1P, sB1P, sB2P = 52, 54, 56
sSAVEO = 58


class Stream:
    def __init__(self, a):
        self.a = a
        self.pend = []

    @staticmethod
    def regs(tok):
        m = re.fullmatch(r"v(\d+)", tok)
        if m:
            return {int(m.group(1))}
        m = re.fullmatch(r"v\[(\d+):(\d+)\]", tok)
        if m:
            return set(range(int(m.group(1)), int(m.group(2)) + 1))
        return set()

    def emit(self, s):
        op, _, rest = s.partition(" ")
        toks = re.findall(r"v\[\d+:\d+\]|v\d+", rest)
        allr = set()
        for t in toks:
            allr |= self.regs(t)
        isds = op.startswith("ds_")
        dst = set()
        if isds and op.startswith("ds_read"):
            dst = self.regs(toks[0])
            allr = set()
            for t in toks[1:]:
                allr |= self.regs(t)
        need = -1
        for i, p in enumerate(self.pend):
            if p & allr:
                need = i
        if need >= 0:
            n = len(self.pend) - 1 - need
            self.wait(n)
        self.a(s)
        if isds:
            self.pend.append(dst)

    def wait(self, n, extra=""):
        n = min(n, 15)
        self.a(f"s_waitcnt {extra}lgkmcnt({n})")
        self.pend = self.pend[len(self.pend) - n:] if n else []

    def wait_writes(self, extra=""):
        last = -1
        for i, p in enumerate(self.pend):
            if not p:
                last = i
        if last >= 0:
            self.wait(len(self.pend) - 1 - last, extra)
        elif extra:
            self.a(f"s_waitcnt {extra.strip()}")


def mfma(d, a_, b, c):
    cs = "0" if c is None else vr(c, 16)
    return f"v_mfma_f32_32x32x16_bf16 {vr(d, 16)}, {vr(a_, 4)}, {vr(b, 4)}, {cs}"


def silu_stream(zc, zp):
    out = []
    for k in range(8):
        t = T + 2 * (k & 1)
        tp = T + 2 * ((k + 1) & 1)
        zprev = zc + 2 * (k - 1) if k else zp + 14
        hprev = H + (k - 1) % 8
        out += [
            f"v_exp_f32 v{t}, v{zc + 2 * k}",
            f"v_exp_f32 v{t + 1}, v{zc + 2 * k + 1}",
            f"v_pk_mul_f32 {vr(tp, 2)}, {vr(zprev, 2)}, {vr(tp, 2)}",
            f"v_pk_add_f32 {vr(t, 2)}, {vr(t, 2)}, {sr(sONE, 2)}",
            f"v_cvt_pk_bf16_f32 v{hprev}, v{tp}, v{tp + 1}",
            f"v_rcp_f32 v{t}, v{t}",
            f"v_rcp_f32 v{t + 1}, v{t + 1}",
        ]
    return out


def xread(j, slot_off):
    ad = vXA1 if j & 1 else vXA0
    return f"ds_read_b128 {vr(X + 4 * j, 4)}, v{ad} offset:{slot_off + (j >> 1) * 64}"


def p1read(m, slot):
    return f"ds_read_b128 {vr(P1 + 4 * m, 4)}, v{vP1A} offset:{slot * PT + m * 32}"


def p2read(m, i, slot):
    return f"ds_read_b64_tr_b16 {vr(P2 + 4 * m + 2 * i, 2)}, v{vP2A} offset:{slot * PT + (4 * m + 2 * i) * 272}"


def g1(ct, zb):
    out = []
    for j in range(8):
        out.append(mfma(zb, X + 4 * j, W + 32 * ct + 4 * j, None if j == 0 else zb))
    for m in range(2):
        out.append(mfma(zb, P1 + 4 * m, BT + 8 * ct + 4 * m, zb))
    return out


def agg(c, m):
    return mfma(S + 16 * c, H + 4 * m, P2 + 4 * m, S + 16 * c)


G1POS = [2, 10, 14, 18, 22, 26, 30, 34, 38, 42]
AG1POS, AG0POS = 6, 49


def pbuild(slot):
    return [
        f"s_mov_b64 exec, {sr(sMPB, 2)}",
        f"ds_write_b16 v{vOLD + slot}, v{vZERO} offset:{slot * PT}",
        f"v_add_u32_sdwa v{vOLD + slot}, v{vPW}, v{vHOLD} dst_sel:DWORD dst_unused:UNUSED_PAD src0_sel:DWORD src1_sel:BYTE_0",
        f"ds_write_b32 v{vPW}, v{vHOLD + 1} offset:{slot * PT + 60}",
        f"ds_write_b16 v{vOLD + slot}, v{vONE} offset:{slot * PT}",
        "s_mov_b64 exec, -1",
    ]


def listread(tile_imm):
    o = tile_imm * 32
    return f"ds_read2_b64 {vr(vREC, 4)}, v{vLA} offset0:{o} offset1:{o + 4}"


def dma_and_hold(slot):
    return [
        f"v_bfi_b32 v{vD0}, s{sFF}, v{vCO}, v{vREC}",
        f"s_add_u32 m0, s{sM0X}, {slot * XT}",
        f"v_bfi_b32 v{vD1}, s{sFF}, v{vCO}, v{vREC + 2}",
        f"buffer_load_dwordx4 v{vD0}, {sr(sX, 4)}, 0 offen lds",
        f"s_add_u32 m0, s{sM0X}, {slot * XT + 1088}",
        f"v_cndmask_b32 v{vHOLD}, v{vREC}, v{vREC + 2}, {sr(sSEL, 2)}",
        f"buffer_load_dwordx4 v{vD1}, {sr(sX, 4)}, 0 offen lds",
        f"v_cndmask_b32 v{vHOLD + 1}, v{vREC + 1}, v{vREC + 3}, {sr(sSEL, 2)}",
    ]


def emit_slot(st, valu, after):
    for i, v in enumerate(valu):
        st.emit(v)
        for x in after.get(i, []):
            st.emit(x) if not x.endswith(":") else st.a(x)


def loop_body(a, st, ph):
    nx = (ph + 1) % 3
    st.wait_writes("vmcnt(2) ")
    a("s_barrier")
    after = {}

    def add(p, *xs):
        after.setdefault(p, []).extend(xs)

    g = g1(1, Z + 16)
    for j, p in enumerate(G1POS):
        add(p, g[j])
        if j < 8:
            add(p, xread(j, nx * XT))
        else:
            add(p, p1read(j - 8, nx))
    add(0, listread(ph))
    add(AG1POS, agg(1, 1), f"s_cmp_eq_u32 s{sT}, s{sT0}", f"s_cbranch_scc1 hookA_{ph}", f"backA_{ph}:",
        p2read(1, 0, ph), p2read(1, 1, ph))
    add(8, *pbuild((ph + 2) % 3))
    add(16, *dma_and_hold(ph))
    if ph == 2:
        add(20, f"v_add_u32 v{vLA}, 768, v{vLA}")
    add(AG0POS, agg(0, 0))
    emit_slot(st, silu_stream(Z, Z + 16), after)
    after = {}
    a(f"s_cmp_eq_u32 s{sT}, s{sT0M1}")
    a(f"s_cbranch_scc1 hookB_{ph}")
    a.label(f"backB_{ph}")
    a(f"s_cmp_eq_u32 s{sT}, s{sTNM1}")
    a(f"s_cbranch_scc1 hookC_{ph}")
    a.label(f"backC_{ph}")
    g = g1(0, Z)
    for j, p in enumerate(G1POS):
        add(p, g[j])
    add(AG1POS, agg(0, 1))
    add(AG0POS, agg(1, 0), p2read(0, 0, nx), p2read(0, 1, nx))
    emit_slot(st, silu_stream(Z + 16, Z), after)
    a(f"s_add_u32 s{sT}, s{sT}, 1")
    a(f"s_cmp_eq_u32 s{sT}, s{sTN}")
    if ph < 2:
        a("s_cbranch_scc1 loop_exit")
    else:
        a("s_cbranch_scc0 loop_top")


def flush(a, grp, region, tag):
    a("s_nop 7")
    a("s_nop 7")
    a(f"s_cmp_eq_u32 s{sROUND}, 0")
    a(f"s_cbranch_scc1 fl_noload_{tag}")
    a(f"s_add_u32 s{sA}, s{sSAVEO}, {grp * 32768}")
    for i in range(8):
        a(f"buffer_load_dwordx4 {vr(H, 4)}, v{vL16}, {sr(sWS, 4)}, s{sA} offen sc0 sc1")
        a(f"s_add_u32 s{sA}, s{sA}, 1024")
        a("s_waitcnt vmcnt(0)")
        for j in range(4):
            a(f"v_add_f32 v{S + 4 * i + j}, v{S + 4 * i + j}, v{H + j}")
    a.label(f"fl_noload_{tag}")
    a(f"s_cmp_eq_u32 s{sMORE}, 0")
    a(f"s_cbranch_scc1 fl_nosave_{tag}")
    a(f"s_add_u32 s{sA}, s{sSAVEO}, {grp * 32768}")
    for i in range(8):
        a(f"buffer_store_dwordx4 {vr(S + 4 * i, 4)}, v{vL16}, {sr(sWS, 4)}, s{sA} offen sc0 sc1")
        a(f"s_add_u32 s{sA}, s{sA}, 1024")
    a("s_waitcnt vmcnt(0)")
    a.label(f"fl_nosave_{tag}")
    for c in range(2):
        b = S + 16 * c
        for k in range(8):
            a(f"v_pk_mul_f32 {vr(b + 2 * k, 2)}, {vr(b + 2 * k, 2)}, {sr(sNLN2, 2)}")
        for k in range(8):
            a(f"v_cvt_pk_bf16_f32 v{b + k}, v{b + 2 * k}, v{b + 2 * k + 1}")
        for m in range(2):
            a(f"ds_write_b128 v{vFA}, {vr(b + 4 * m, 4)} offset:{region + (2 * c + m) * 1024}")


def bgemm(a, dst):
    for ct in range(2):
        acc = P1 + 16 * ct
        for j in range(8):
            a(mfma(acc, X + 4 * j, S + 32 * ct + 4 * j, None if j == 0 else acc))
    a("s_nop 3")
    for ct in range(2):
        acc = P1 + 16 * ct
        if ct == 1:
            pass
        for k in range(8):
            a(f"v_pk_fma_f32 {vr(acc + 2 * k, 2)}, {vr(acc + 2 * k, 2)}, {sr(sNEGL, 2)}, {vr(vB1S + 2 * ct, 2)} op_sel_hi:[1,1,0]")
        for k in range(8):
            a(f"v_cvt_pk_bf16_f32 v{dst + 8 * ct + k}, v{acc + 2 * k}, v{acc + 2 * k + 1}")
        a(f"v_cndmask_b32 v{dst + 8 * ct + 7}, v{dst + 8 * ct + 7}, v{vCPK + ct}, {sr(sHI, 2)}")


def fill_loads(a):
    a(f"v_mov_b32 v{vT3}, 0x7ffffff0")
    for g, (off, n) in enumerate(((vOFA, vNA), (vOFB, vNB))):
        for jj in range(4):
            a(f"v_cmp_lt_u32 vcc, {2 * jj}, v{n}")
            tmp = (vT0, vT1)[jj & 1]
            a("s_nop 1")
            a(f"v_cndmask_b32 v{tmp}, v{vT3}, v{off}, vcc")
            a(f"buffer_load_dwordx4 {vr(W + 32 + 16 * g + 4 * jj, 4)}, v{tmp}, {sr(sWS, 4)}, 0 offen offset:{16 * jj}")


def fill_writes(a):
    for g, (pos, tk) in enumerate(((vPOSA, vTKA), (vPOSB, vTKB))):
        for r in range(8):
            a(f"v_cmpx_lt_u32 vcc, {r}, v{tk}")
            a(f"ds_write_b64 v{pos}, {vr(W + 32 + 16 * g + 2 * r, 2)} offset:{8 * r}")
        a("s_mov_b64 exec, -1")


STAMP = 0x4000000
sST = 70


def stamp(a, opt, k):
    if opt.stamps:
        a(f"s_memtime s[{sST + 2 * k}:{sST + 2 * k + 1}]")
        if k == 0:
            a(f"s_memrealtime s[{sST + 16}:{sST + 17}]")


def stamp_out(a, opt):
    if not opt.stamps:
        return
    a(f"s_memtime s[{sST + 14}:{sST + 15}]")
    a(f"s_memrealtime s[{sST + 18}:{sST + 19}]")
    a("s_waitcnt vmcnt(0) lgkmcnt(0)")
    a(f"s_getreg_b32 s{sST + 20}, hwreg(HW_REG_HW_ID)")
    a(f"s_getreg_b32 s{sST + 21}, hwreg(HW_REG_XCC_ID)")
    a(f"s_lshl_b32 s{sA}, s{sQ}, 2")
    a(f"s_add_u32 s{sA}, s{sA}, s{sW}")
    a(f"s_lshl_b32 s{sA}, s{sA}, 7")
    a(f"s_add_u32 s{sA}, s{sA}, {STAMP:#x}")
    a(f"v_mov_b32 v0, 0")
    for k in range(22):
        a(f"v_mov_b32 v1, s{sST + k}")
        a(f"buffer_store_dword v1, v0, {sr(sWS, 4)}, s{sA} offen offset:{4 * k}")
    a(f"v_mov_b32 v1, s{sTN}")
    a(f"buffer_store_dword v1, v0, {sr(sWS, 4)}, s{sA} offen offset:{4 * 22}")


def gen_main(a, opt):
    teams = opt.teams
    kn = NAME + "_kernel"
    a.label(kn)
    stamp(a, opt, 0)
    a("s_load_dwordx2 s[4:5], s[0:1], 0")
    a("s_load_dwordx4 s[52:55], s[0:1], 32")
    a("s_load_dwordx4 s[60:63], s[0:1], 56")
    a("s_load_dwordx2 s[8:9], s[0:1], 80")
    a(f"v_and_b32 v{vTID}, 255, v0")
    a(f"v_lshrrev_b32 v{vT0}, 6, v0")
    a(f"v_and_b32 v{vLANE}, 63, v0")
    a(f"v_readfirstlane_b32 s{sW}, v{vT0}")
    if teams == 2:
        a(f"s_lshr_b32 s{sA}, s{sW}, 2")
        a(f"s_and_b32 s{sW}, s{sW}, 3")
        a(f"s_lshl_b32 s{sQ}, s2, 1")
        a(f"s_add_u32 s{sQ}, s{sQ}, s{sA}")
        a(f"s_mul_i32 s{sTB}, s{sA}, {TEAMSZ}")
    else:
        a(f"s_mov_b32 s{sQ}, s2")
        a(f"s_mov_b32 s{sTB}, 0")
    a(f"s_cmp_ge_u32 s{sQ}, {NT}")
    a("s_cbranch_scc1 main_done")
    a(f"s_mov_b32 s{sONE}, 1.0")
    a(f"s_mov_b32 s{sONE + 1}, 1.0")
    a(f"s_mov_b32 s{sNEGL}, {f32(-LOG2E)}")
    a(f"s_mov_b32 s{sNEGL + 1}, {f32(-LOG2E)}")
    a(f"s_mov_b32 s{sNLN2}, {f32(-LN2)}")
    a(f"s_mov_b32 s{sNLN2 + 1}, {f32(-LN2)}")
    a(f"s_mov_b32 s{sMPB}, 0x00030003")
    a(f"s_mov_b32 s{sMPB + 1}, 0x00030003")
    a(f"s_mov_b32 s{sSEL}, 0x00020002")
    a(f"s_mov_b32 s{sSEL + 1}, 0x00020002")
    a(f"s_mov_b32 s{sHI}, 0")
    a(f"s_mov_b32 s{sHI + 1}, -1")
    a(f"s_mov_b32 s{sFF}, 0xff")
    a(f"s_mov_b32 s{sROUND}, 0")
    a(f"s_mul_i32 s{sBASE}, s{sQ}, {TN}")
    a(f"s_mul_i32 s{sM0X}, s{sW}, {2 * 1088}")
    a(f"s_add_u32 s{sM0X}, s{sM0X}, s{sTB}")
    a(f"s_lshl_b32 s{sSAVEO}, s{sQ}, 16")
    a(f"s_lshl_b32 s{sA}, s{sW}, 13")
    a(f"s_add_u32 s{sSAVEO}, s{sSAVEO}, s{sA}")
    a(f"s_add_u32 s{sSAVEO}, s{sSAVEO}, {SAVE:#x}")
    L = vLANE
    a(f"v_and_b32 v{vT0}, 31, v{L}")
    a(f"v_lshrrev_b32 v{vT1}, 5, v{L}")
    a(f"v_lshrrev_b32 v{vT2}, 2, v{vT0}")
    a(f"v_and_b32 v{vT3}, 3, v{vT0}")
    a(f"v_mul_u32_u24 v{vXA0}, 1088, v{vT2}")
    a(f"v_lshl_add_u32 v{vXA0}, v{vT3}, 8, v{vXA0}")
    a(f"v_add_u32 v{vXA0}, s{sTB}, v{vXA0}")
    a(f"v_xor_b32 v{vD0}, v{vT1}, v{vT3}")
    a(f"v_xor_b32 v{vD1}, 2, v{vD0}")
    a(f"v_lshl_add_u32 v{vXA1}, v{vD1}, 4, v{vXA0}")
    a(f"v_lshl_add_u32 v{vXA0}, v{vD0}, 4, v{vXA0}")
    a(f"s_add_u32 s{sA}, s{sTB}, {PR}")
    a(f"v_lshlrev_b32 v{vP1A}, 6, v{vT0}")
    a(f"v_add_u32 v{vD0}, v{vT2}, v{vT1}")
    a(f"v_lshl_add_u32 v{vP1A}, v{vD0}, 4, v{vP1A}")
    a(f"v_add_u32 v{vP1A}, s{sA}, v{vP1A}")
    a(f"v_mul_u32_u24 v{vP2A}, 272, v{vT1}")
    a(f"v_bfe_u32 v{vD0}, v{L}, 2, 2")
    a(f"v_lshl_add_u32 v{vP2A}, v{vD0}, 6, v{vP2A}")
    a(f"v_bfe_u32 v{vD0}, v{L}, 4, 1")
    a(f"v_lshl_add_u32 v{vP2A}, v{vD0}, 5, v{vP2A}")
    a(f"v_lshl_add_u32 v{vP2A}, v{vT3}, 3, v{vP2A}")
    a(f"v_add_u32 v{vP2A}, s{sA}, v{vP2A}")
    a(f"v_lshrrev_b32 v{vT2}, 4, v{L}")
    a(f"v_and_b32 v{vT3}, 15, v{L}")
    a(f"v_xor_b32 v{vCO}, v{vT2}, v{vT3}")
    a(f"v_lshlrev_b32 v{vCO}, 4, v{vCO}")
    a(f"v_and_b32 v{vT3}, 1, v{L}")
    a(f"s_mul_i32 s{sB}, s{sW}, {8 * 64 + 2 * 16}")
    a(f"s_add_u32 s{sA}, s{sA}, s{sB}")
    a(f"v_mul_u32_u24 v{vPW}, {4 * 64 + 16}, v{vT3}")
    a(f"v_lshl_add_u32 v{vPW}, v{vT2}, 6, v{vPW}")
    a(f"v_add_u32 v{vPW}, s{sA}, v{vPW}")
    a(f"v_mov_b32 v{vONE}, 0x3f80")
    a(f"v_mov_b32 v{vZERO}, 0")
    a(f"v_lshlrev_b32 v{vL16}, 4, v{L}")
    a(f"s_lshl_b32 s{sA}, s{sW}, 12")
    a(f"s_add_u32 s{sA}, s{sA}, s{sTB}")
    a(f"v_add_u32 v{vFA}, s{sA}, v{vL16}")
    a(f"v_mul_u32_u24 v{vCHB}, {CH * 8}, v{vTID}")
    a("s_waitcnt lgkmcnt(0)")
    srd(a, sX, 4, 5, N * 256)
    srd(a, sWS, 8, 9, WS_BYTES)
    srd(a, sOUT, 62, 63, N * 256)
    a(f"s_mov_b32 s{sB2P}, s60")
    a(f"s_mov_b32 s{sB2P + 1}, s61")
    a(f"v_mul_u32_u24 v{vT0}, {TABSTR}, v{vTID}")
    a(f"s_lshl_b32 s{sA}, s{sQ}, 2")
    a(f"s_add_u32 s{sA}, s{sA}, {TAB:#x}")
    a(f"buffer_load_dwordx2 {vr(vCURA, 2)}, v{vT0}, {sr(sWS, 4)}, s{sA} offen")
    a(f"v_lshlrev_b32 v{vT0}, 2, v{vLANE}")
    a(f"v_add_u32 v{vT0}, s{sTB}, v{vT0}")
    a(f"ds_write_b32 v{vT0}, v{vZERO} offset:{CN}")
    a.label("round_top")
    a(f"v_lshlrev_b32 v{vT0}, 4, v{vTID}")
    a(f"v_add_u32 v{vT0}, s{sTB}, v{vT0}")
    for i in range(4):
        a(f"v_mov_b32 v{T + i}, 0")
    a(f"v_mov_b32 v{T + 4}, {PADREC:#x}")
    a(f"v_mov_b32 v{T + 5}, 0")
    a(f"v_mov_b32 v{T + 6}, {PADREC:#x}")
    a(f"v_mov_b32 v{T + 7}, 0")
    a(f"ds_write_b128 v{vT0}, {vr(T, 4)} offset:{PR}")
    a(f"ds_write_b128 v{vT0}, {vr(T + 4, 4)} offset:{LA}")
    a(f"ds_write_b128 v{vT0}, {vr(T + 4, 4)} offset:{LA + 4096}")
    a(f"v_cmpx_gt_u32 vcc, {(3 * PT - 4096) // 16}, v{vTID}")
    a(f"ds_write_b128 v{vT0}, {vr(T, 4)} offset:{PR + 4096}")
    a(f"v_cmpx_gt_u32 vcc, {(LSZ - 8192) // 16}, v{vTID}")
    a(f"ds_write_b128 v{vT0}, {vr(T + 4, 4)} offset:{LA + 8192}")
    a(f"v_cmpx_gt_u32 vcc, 1, v{vTID}")
    a(f"ds_write_b64 v{vT0}, {vr(T, 2)} offset:{RS}")
    a("s_mov_b64 exec, -1")
    for i in range(3):
        a(f"v_mov_b32 v{vOLD + i}, v{vPW}")
    a(f"v_lshrrev_b32 v{vT2}, 4, v{vLANE}")
    a(f"s_lshl_b32 s{sA}, s{sW}, 6")
    a(f"s_add_u32 s{sA}, s{sA}, s{sTB}")
    a(f"s_add_u32 s{sA}, s{sA}, {LA}")
    a(f"v_lshlrev_b32 v{vLA}, 3, v{vT2}")
    a(f"v_add_u32 v{vLA}, s{sA}, v{vLA}")
    a(f"s_lshr_b32 s{sA}, s{sW}, 1")
    a(f"s_lshl_b32 s{sA}, s{sA}, 4")
    a(f"s_and_b32 s{sB}, s{sW}, 1")
    a(f"s_lshl_b32 s{sB}, s{sB}, 2")
    a(f"s_add_u32 s{sA}, s{sA}, s{sB}")
    a(f"s_add_u32 s{sA}, s{sA}, s{sBASE}")
    a(f"v_add_u32 v{vT2}, s{sA}, v{vT2}")
    a(f"v_lshl_add_u32 v{vT2}, v{vT2}, 8, v{vCO}")
    for g in range(2):
        for ii in range(2):
            a(f"s_mov_b32 s{sA}, {(GA * g + 8 * ii) * 256}")
            a(f"s_add_u32 m0, s{sM0X}, {ST + g * XT + ii * 1088}")
            a("s_nop 0")
            a(f"buffer_load_dwordx4 v{vT2}, {sr(sX, 4)}, s{sA} offen lds")
    a(f"s_lshl_b32 s{sB}, s{sW}, 14")
    a(f"s_add_u32 s{sB}, s{sB}, {WFR:#x}")
    for k in range(16):
        if k % 4 == 0:
            a(f"s_add_u32 s{sA}, s{sB}, {65536 + k * 1024}")
        a(f"buffer_load_dwordx4 {vr(S + 4 * k, 4)}, v{vL16}, {sr(sWS, 4)}, s{sA} offen offset:{(k % 4) * 1024}")
    a(f"v_and_b32 v{vT0}, 31, v{vLANE}")
    a(f"s_lshl_b32 s{sA}, s{sW}, 7")
    a(f"v_lshl_add_u32 v{vT0}, v{vT0}, 1, s{sA}")
    srd(a, sTMP, sB1P, sB1P + 1, 512)
    a(f"buffer_load_ushort v{vB1S}, v{vT0}, {sr(sTMP, 4)}, 0 offen")
    a(f"buffer_load_ushort v{vB1S + 2}, v{vT0}, {sr(sTMP, 4)}, 0 offen offset:64")
    srd(a, 64, sW1P, sW1P + 1, 257 * 512)
    a(f"s_mov_b32 s{sA}, {256 * 512}")
    a(f"buffer_load_ushort v{vCPK}, v{vT0}, s[64:67], s{sA} offen")
    a(f"buffer_load_ushort v{vCPK + 1}, v{vT0}, s[64:67], s{sA} offen offset:64")
    a("s_waitcnt lgkmcnt(0)")
    a("s_barrier")
    stamp(a, opt, 1)
    a(f"s_cmp_lg_u32 s{sROUND}, 0")
    a("s_cbranch_scc1 have_table")
    a("s_waitcnt vmcnt(24)")
    a(f"v_lshrrev_b32 v{vCURB}, 16, v{vCURA}")
    a(f"v_and_b32 v{vREMB}, 0xffff, v{vREMA}")
    a(f"v_and_b32 v{vCURA}, 0xffff, v{vCURA}")
    a(f"v_cmp_gt_u32 vcc, {NCH}, v{vTID}")
    a(f"v_sub_u32 v{vREMB}, v{vREMB}, v{vCURB}")
    a(f"v_sub_u32 v{vREMA}, v{vCURB}, v{vCURA}")
    a(f"v_cndmask_b32 v{vREMB}, 0, v{vREMB}, vcc")
    a(f"v_cndmask_b32 v{vREMA}, 0, v{vREMA}, vcc")
    a.label("have_table")
    a(f"v_lshl_add_u32 v{vOFA}, v{vCURA}, 3, v{vCHB}")
    a(f"v_lshl_add_u32 v{vOFB}, v{vCURB}, 3, v{vCHB}")
    a(f"v_mov_b32 v{vNA}, v{vREMA}")
    a(f"v_mov_b32 v{vNB}, v{vREMB}")
    a(f"v_mov_b32 v{vT2}, s{sTB}")
    a(f"ds_add_rtn_u32 v{vPOSA}, v{vT2}, v{vREMA} offset:{RS}")
    a(f"ds_add_rtn_u32 v{vPOSB}, v{vT2}, v{vREMB} offset:{RS + 4}")
    fill_loads(a)
    for k in range(8):
        if k % 4 == 0:
            a(f"s_add_u32 s{sA}, s{sB}, {k * 1024}")
        a(f"buffer_load_dwordx4 {vr(W + 4 * k, 4)}, v{vL16}, {sr(sWS, 4)}, s{sA} offen offset:{(k % 4) * 1024}")
    a("s_waitcnt vmcnt(16) lgkmcnt(0)")
    a("s_barrier")
    stamp(a, opt, 2)
    if opt.stamps:
        a("s_waitcnt lgkmcnt(0)")
    a(f"ds_read_b64 {vr(vD0, 2)}, v{vT2} offset:{RS}")
    for j in range(8):
        a(xread(j, ST))
    for ct in range(2):
        b, cp = vB1S + 2 * ct, vCPK + ct
        a(f"v_lshlrev_b32 v{b}, 16, v{b}")
        a(f"v_mul_f32 v{b}, s{sNEGL}, v{b}")
        a(f"v_lshlrev_b32 v{cp}, 16, v{cp}")
        a(f"v_mul_f32 v{cp}, s{sNEGL}, v{cp}")
        a(f"v_cvt_pk_bf16_f32 v{vT0}, v{cp}, v{cp}")
        a(f"v_lshlrev_b32 v{vT0}, 16, v{vT0}")
        a(f"v_sub_f32 v{cp}, v{cp}, v{vT0}")
        a(f"v_cvt_pk_bf16_f32 v{cp}, v{vT0}, v{cp}")
    a(f"v_mov_b32 v{vT0}, {CAP}")
    a(f"v_sub_u32 v{vTKA}, v{vT0}, v{vPOSA} clamp")
    a(f"v_sub_u32 v{vTKB}, v{vT0}, v{vPOSB} clamp")
    a(f"v_min_u32 v{vTKA}, v{vTKA}, v{vREMA}")
    a(f"v_min_u32 v{vTKB}, v{vTKB}, v{vREMB}")
    a(f"v_add_u32 v{vCURA}, v{vCURA}, v{vTKA}")
    a(f"v_add_u32 v{vCURB}, v{vCURB}, v{vTKB}")
    a(f"v_sub_u32 v{vREMA}, v{vREMA}, v{vTKA}")
    a(f"v_sub_u32 v{vREMB}, v{vREMB}, v{vTKB}")
    a("s_waitcnt lgkmcnt(8)")
    a(f"v_readfirstlane_b32 s{sC}, v{vD0}")
    a(f"v_readfirstlane_b32 s{sD}, v{vD1}")
    a(f"s_max_u32 s{sA}, s{sC}, s{sD}")
    a(f"s_cmp_gt_u32 s{sA}, {CAP}")
    a(f"s_cselect_b32 s{sMORE}, 1, 0")
    a(f"s_min_u32 s{sC}, s{sC}, {CAP}")
    a(f"s_min_u32 s{sD}, s{sD}, {CAP}")
    a(f"s_add_u32 s{sC}, s{sC}, 31")
    a(f"s_add_u32 s{sD}, s{sD}, 31")
    a(f"s_lshr_b32 s{sC}, s{sC}, 5")
    a(f"s_lshr_b32 s{sD}, s{sD}, 5")
    a(f"s_max_u32 s{sT0}, s{sC}, 1")
    a(f"s_max_u32 s{sD}, s{sD}, 1")
    a(f"s_add_u32 s{sTN}, s{sT0}, s{sD}")
    a(f"s_sub_u32 s{sT0M1}, s{sT0}, 1")
    a(f"s_sub_u32 s{sTNM1}, s{sTN}, 1")
    a(f"s_mov_b32 s{sT}, 0")
    a(f"s_add_u32 s{sA}, s{sTB}, {LA}")
    a(f"v_lshl_add_u32 v{vPOSA}, v{vPOSA}, 3, s{sA}")
    a(f"s_lshl_b32 s{sC}, s{sT0}, 8")
    a(f"s_add_u32 s{sA}, s{sA}, s{sC}")
    a(f"v_lshl_add_u32 v{vPOSB}, v{vPOSB}, 3, s{sA}")
    a("s_waitcnt lgkmcnt(0)")
    bgemm(a, BT)
    for j in range(8):
        a(xread(j, ST + XT))
    a("s_waitcnt vmcnt(8)")
    a.label("fill_loop")
    fill_writes(a)
    a(f"v_max_u32 v{vT0}, v{vTKA}, v{vTKB}")
    a(f"v_cmp_lt_u32 vcc, 8, v{vT0}")
    a("s_cbranch_vccz fill_done")
    for r in (vTKA, vTKB, vNA, vNB):
        a(f"v_subrev_u32 v{r}, 8, v{r} clamp")
    for r in (vPOSA, vPOSB, vOFA, vOFB):
        a(f"v_add_u32 v{r}, 64, v{r}")
    a("s_waitcnt lgkmcnt(0)")
    fill_loads(a)
    a("s_waitcnt vmcnt(0)")
    a("s_branch fill_loop")
    a.label("fill_done")
    a("s_waitcnt lgkmcnt(0)")
    a("s_barrier")
    stamp(a, opt, 3)
    for k in range(8, 16):
        if k % 4 == 0:
            a(f"s_add_u32 s{sA}, s{sB}, {k * 1024}")
        a(f"buffer_load_dwordx4 {vr(W + 4 * k, 4)}, v{vL16}, {sr(sWS, 4)}, s{sA} offen offset:{(k % 4) * 1024}")
    for t in range(3):
        a(listread(t))
        a("s_waitcnt lgkmcnt(0)")
        for x in dma_and_hold(t):
            a(x)
        if t < 2:
            for x in pbuild(t):
                a(x)
    a(f"v_add_u32 v{vLA}, 768, v{vLA}")
    bgemm(a, X)
    for i in range(4):
        a(f"ds_write_b128 v{vFA}, {vr(X + 4 * i, 4)} offset:{ST + i * 1024}")
    a(f"v_lshlrev_b32 v{vT0}, 3, v{vTID}")
    a(f"v_add_u32 v{vT0}, s{sTB}, v{vT0}")
    for k in range(4):
        a(f"ds_read_b32 v{T + k}, v{vT0} offset:{LA + k * 2048}")
    a(f"s_lshl_b32 s{sC}, s{sT0}, 5")
    a(f"s_add_u32 s{sA}, s{sTB}, {CN}")
    a(f"v_mov_b32 v{vT0}, s{sA}")
    a(f"v_add_u32 v{vT1}, 128, v{vT0}")
    a(f"v_mov_b32 v{vT3}, 1")
    for k in range(4):
        a(f"v_add_u32 v{vT2}, {k * 256}, v{vTID}")
        a(f"v_cmp_le_u32 vcc, s{sC}, v{vT2}")
        a(f"s_waitcnt lgkmcnt({3 - k if k == 0 else 3})")
        a(f"v_and_b32 v{T + k}, 0x3e, v{T + k}")
        a(f"v_cndmask_b32 v{vT2}, v{vT0}, v{vT1}, vcc")
        a(f"v_lshl_add_u32 v{vT2}, v{T + k}, 1, v{vT2}")
        a(f"ds_add_u32 v{vT2}, v{vT3}")
    for i in range(32):
        a(f"v_mov_b32 v{S + i}, 0")
    for i in range(16):
        a(f"v_mov_b32 v{Z + 16 + i}, 0")
    for i in range(8):
        a(f"v_mov_b32 v{H + i}, 0")
        a(f"v_mov_b32 v{P2 + i}, 0")
    for i in range(4):
        a(f"v_mov_b32 v{T + i}, 0")
    a("s_waitcnt vmcnt(4) lgkmcnt(0)")
    a("s_barrier")
    stamp(a, opt, 4)
    for j in range(8):
        a(xread(j, 0))
    a(p1read(0, 0))
    a(p1read(1, 0))
    a(p2read(0, 0, 0))
    a(p2read(0, 1, 0))
    a("s_waitcnt lgkmcnt(0)")
    for x in g1(0, Z):
        a(x)
    a("s_nop 7")
    a("s_nop 3")
    dummy = Asm()
    st = Stream(dummy)
    for ph in range(3):
        loop_body(dummy, st, ph)
    st.a = a
    start = [set(p) for p in st.pend]
    a.label("loop_top")
    for ph in range(3):
        loop_body(a, st, ph)
    assert [set(p) for p in st.pend] == start
    a.label("loop_exit")
    stamp(a, opt, 5)
    tp = T + 2
    a(f"v_pk_mul_f32 {vr(tp, 2)}, {vr(Z + 30, 2)}, {vr(tp, 2)}")
    a(f"v_cvt_pk_bf16_f32 v{H + 7}, v{tp}, v{tp + 1}")
    a("s_waitcnt vmcnt(0) lgkmcnt(0)")
    a("s_barrier")
    a(agg(1, 1))
    flush(a, 1, XR, "end")
    a(f"s_cmp_eq_u32 s{sMORE}, 0")
    a("s_cbranch_scc1 last_round")
    a(f"s_add_u32 s{sROUND}, s{sROUND}, 1")
    a("s_waitcnt lgkmcnt(0)")
    a("s_barrier")
    a("s_branch round_top")
    a.label("last_round")
    srd(a, sTMP, sB2P, sB2P + 1, 256)
    a(f"v_lshrrev_b32 v{vT1}, 5, v{vLANE}")
    a(f"s_lshl_b32 s{sA}, s{sW}, 6")
    a(f"v_lshl_add_u32 v{vT1}, v{vT1}, 5, s{sA}")
    a(f"buffer_load_dwordx4 {vr(P1, 4)}, v{vT1}, {sr(sTMP, 4)}, 0 offen")
    a(f"buffer_load_dwordx4 {vr(P1 + 4, 4)}, v{vT1}, {sr(sTMP, 4)}, 0 offen offset:16")
    a(f"v_and_b32 v{vT0}, 31, v{vLANE}")
    a(f"v_lshl_add_u32 v{vT2}, v{vT0}, 2, s{sTB}")
    a(f"v_add_u32 v{vT3}, s{sTB}, v{vL16}")
    a("s_waitcnt lgkmcnt(0)")
    a("s_barrier")
    stamp(a, opt, 6)
    if opt.stamps:
        a("s_waitcnt lgkmcnt(0)")
    a(f"ds_read_b32 v{T}, v{vT2} offset:{CN}")
    a(f"ds_read_b32 v{T + 1}, v{vT2} offset:{CN + 128}")

    def sfr(f):
        return (X + 4 * f) if f < 8 else (Z + 4 * (f - 8))

    for f in range(13):
        a(f"ds_read_b128 {vr(sfr(f), 4)}, v{vT3} offset:{ST + f * 1024}")
    a("s_waitcnt vmcnt(0)")
    for k in range(8):
        a(f"v_lshlrev_b32 v{BT + 2 * k}, 16, v{P1 + k}")
        a(f"v_and_b32 v{BT + 2 * k + 1}, 0xffff0000, v{P1 + k}")
    a("s_waitcnt lgkmcnt(13)")
    for f in range(13, 16):
        a(f"ds_read_b128 {vr(sfr(f), 4)}, v{vT3} offset:{ST + f * 1024}")
    a(f"v_cvt_f32_u32 v{T}, v{T}")
    a(f"v_cvt_f32_u32 v{T + 1}, v{T + 1}")
    for g in range(2):
        for k in range(16):
            a(f"v_mul_f32 v{S + 16 * g + k}, v{T + g}, v{BT + k}")
    a(f"v_add_u32 v{vT2}, s{sBASE}, v{vT0}")
    a(f"v_lshl_add_u32 v{vT2}, v{vT2}, 8, v{vT1}")
    for f in range(16):
        a(f"s_waitcnt lgkmcnt({15 if f else 15})" if f == 0 else "s_waitcnt lgkmcnt(15)")
        a(mfma(S, W + 4 * f, sfr(f), S))
        a(f"ds_read_b128 {vr(sfr(f), 4)}, v{vT3} offset:{XR + f * 1024}")
    for f in range(16):
        a(f"s_waitcnt lgkmcnt({15 - f})")
        a(mfma(S + 16, W + 4 * f, sfr(f), S + 16))
    for g in range(2):
        b = S + 16 * g
        if g == 1:
            a("s_nop 7")
            a("s_nop 3")
        for k in range(8):
            a(f"v_cvt_pk_bf16_f32 v{BT + 8 * g + k}, v{b + 2 * k}, v{b + 2 * k + 1}")
        a(f"v_cmpx_gt_u32 vcc, {GA if g == 0 else TN - GA}, v{vT0}")
        a(f"s_mov_b32 s{sA}, {GA * g * 256}")
        a(f"buffer_store_dwordx4 {vr(BT + 8 * g, 4)}, v{vT2}, {sr(sOUT, 4)}, s{sA} offen")
        a(f"buffer_store_dwordx4 {vr(BT + 8 * g + 4, 4)}, v{vT2}, {sr(sOUT, 4)}, s{sA} offen offset:16")
        a("s_mov_b64 exec, -1")
    stamp_out(a, opt)
    a.label("main_done")
    a("s_endpgm")
    for ph in range(3):
        a.label(f"hookA_{ph}")
        flush(a, 0, ST, f"a{ph}")
        a("s_waitcnt lgkmcnt(0)")
        for i in range(32):
            a(f"v_mov_b32 v{S + i}, 0")
        a(f"s_branch backA_{ph}")
        a.label(f"hookB_{ph}")
        for i in range(4):
            a(f"ds_read_b128 {vr(BT + 4 * i, 4)}, v{vFA} offset:{ST + i * 1024}")
        a("s_waitcnt lgkmcnt(0)")
        a(f"s_branch backB_{ph}")
        a.label(f"hookC_{ph}")
        a(f"s_lshl_b32 s{sB}, s{sW}, 14")
        a(f"s_add_u32 s{sB}, s{sB}, {WFR + 131072:#x}")
        for k in range(16):
            if k % 4 == 0:
                a(f"s_add_u32 s{sA}, s{sB}, {k * 1024}")
            a(f"buffer_load_dwordx4 {vr(W + 4 * k, 4)}, v{vL16}, {sr(sWS, 4)}, s{sA} offen offset:{(k % 4) * 1024}")
        a(f"s_branch backC_{ph}")
    grid = NT if teams == 1 else (NT + 1) // 2
    return dict(vgpr=256, sgpr=96 if opt.stamps else 72, lds=TEAMSZ * teams, grid=grid, block=256 * teams)


HEADER = """; Kernarg layout for this problem (88 bytes, ptrs only, base s[0:1]):
"""


def kd(name, info):
    acc = (info["vgpr"] + 3) // 4 * 4
    return f""".amdhsa_kernel {name}
  .amdhsa_next_free_vgpr {info['vgpr']}
  .amdhsa_next_free_sgpr {info['sgpr']}
  .amdhsa_accum_offset {acc}
  .amdhsa_group_segment_fixed_size 0
  .amdhsa_kernarg_size 88
  .amdhsa_user_sgpr_count 2
  .amdhsa_user_sgpr_kernarg_segment_ptr 1
  .amdhsa_system_sgpr_workgroup_id_x 1
.end_amdhsa_kernel
"""


def build(opt):
    b, m = Asm(), Asm()
    ib = gen_bin(b, opt)
    im = gen_main(m, opt)
    kn = NAME + "_kernel"
    out = HEADER
    out += f"; @launch kernel=bin_kernel grid=({ib['grid']},1,1) block=({ib['block']},1,1) lds={ib['lds']}\n"
    for _ in range(opt.extra):
        out += "; @launch kernel=nop_kernel grid=(1,1,1) block=(64,1,1) lds=0\n"
    out += f"; @launch kernel={kn} grid=({im['grid']},1,1) block=({im['block']},1,1) lds={im['lds']}\n"
    out += '.amdgcn_target "amdgcn-amd-amdhsa--gfx950"\n.text\n'
    out += ".globl bin_kernel\n.p2align 8\n.type bin_kernel,@function\n" + b.text()
    out += f".globl {kn}\n.p2align 8\n.type {kn},@function\n" + m.text()
    if opt.extra:
        out += ".globl nop_kernel\n.p2align 8\n.type nop_kernel,@function\nnop_kernel:\n    s_endpgm\n"
    out += '.section .rodata,"a"\n.p2align 6\n' + kd("bin_kernel", ib) + ".p2align 6\n" + kd(kn, im)
    if opt.extra:
        out += ".p2align 6\n" + kd("nop_kernel", dict(vgpr=8, sgpr=16))
    return out


if __name__ == "__main__":
    ap = argparse.ArgumentParser()
    ap.add_argument("-o", default=f"cdna_kernels/{NAME}.s")
    ap.add_argument("--teams", type=int, default=1)
    ap.add_argument("--stamps", action="store_true")
    ap.add_argument("--extra", type=int, default=0, help="extra empty launches (experiment)")
    opt = ap.parse_args()
    txt = build(opt)
    open(opt.o, "w").write(txt)
    sys.path.insert(0, "gen")
    import asmcheck
    r = asmcheck.check(txt)
    for x in r:
        print(x)
    print(len(r), "findings;", len(txt.splitlines()), "lines; team LDS", TEAMSZ)
```

```python
def vr(a, n=1):
    return f"v{a}" if n == 1 else f"v[{a}:{a + n - 1}]"
def sr(a, n=1):
    return f"s{a}" if n == 1 else f"s[{a}:{a + n - 1}]"

def tpart(R, y, rec):
    return [f"v_pk_fma_f32 {vr(y + 2 * m, 2)}, {vr(rec, 2)}, {vr(R['C'] + 2 * m, 2)}, {vr(R['B'] + 2 * m, 2)} op_sel:[1,0,0] op_sel_hi:[1,1,1]" for m in range(4)]

def zpart(R, y, g):
    lo = [f"v_dot2_f32_bf16 v{y + i}, v{g + i}, s{R['sSEL']}, v{y + i}" for i in range(4)]
    hi = [f"v_pk_add_f32 {vr(y + 4 + 2 * m, 2)}, {vr(g + 2 * m, 2)}, {vr(y + 4 + 2 * m, 2)}" for m in range(2)]
    return lo, hi

def act_pair(R, ms):
    Y1, Y2, U1, U2, A, K = R['Y1'], R['Y2'], R['U1'], R['U2'], R['ACC'], R['sK']
    out = []
    prev = None
    for m in ms:
        o = 2 * m
        out += [f"v_exp_f32 v{U1 + o}, -v{Y1 + o}", f"v_exp_f32 v{U1 + o + 1}, -v{Y1 + o + 1}"]
        if prev is not None:
            p = 2 * prev
            out += [f"v_pk_fma_f32 {vr(A + p, 2)}, {vr(Y1 + p, 2)}, {vr(U1 + p, 2)}, {vr(A + p, 2)}"]
        out += [f"v_exp_f32 v{U2 + o}, -v{Y2 + o}", f"v_exp_f32 v{U2 + o + 1}, -v{Y2 + o + 1}",
                f"v_pk_fma_f32 {vr(U1 + o, 2)}, {vr(U1 + o, 2)}, {sr(K, 2)}, {sr(K, 2)} clamp",
                f"v_pk_fma_f32 {vr(U2 + o, 2)}, {vr(U2 + o, 2)}, {sr(K, 2)}, {sr(K, 2)} clamp",
                f"v_pk_mul_f32 {vr(Y2 + o, 2)}, {vr(Y2 + o, 2)}, {vr(U1 + o, 2)}",
                f"v_pk_mul_f32 {vr(U1 + o, 2)}, {vr(U1 + o, 2)}, {vr(U2 + o, 2)}",
                f"v_pk_fma_f32 {vr(Y1 + o, 2)}, {vr(Y1 + o, 2)}, {vr(U2 + o, 2)}, {vr(Y2 + o, 2)}",
                f"v_rcp_f32 v{U1 + o}, v{U1 + o}", f"v_rcp_f32 v{U1 + o + 1}, v{U1 + o + 1}"]
        prev = m
    p = 2 * prev
    tail = [f"v_pk_fma_f32 {vr(A + p, 2)}, {vr(Y1 + p, 2)}, {vr(U1 + p, 2)}, {vr(A + p, 2)}"]
    return out, tail

def act_plain(R, ms):
    Y1, Y2, U1, U2, A, ONE = R['Y1'], R['Y2'], R['U1'], R['U2'], R['ACC'], R['sONE']
    out = []
    prev = None
    for m in ms:
        o = 2 * m
        out += [f"v_exp_f32 v{U1 + o}, -v{Y1 + o}", f"v_exp_f32 v{U1 + o + 1}, -v{Y1 + o + 1}"]
        if prev is not None:
            p = 2 * prev
            out += [f"v_pk_fma_f32 {vr(A + p, 2)}, {vr(Y1 + p, 2)}, {vr(U1 + p, 2)}, {vr(A + p, 2)}"]
        out += [f"v_exp_f32 v{U2 + o}, -v{Y2 + o}", f"v_exp_f32 v{U2 + o + 1}, -v{Y2 + o + 1}"]
        if prev is not None:
            out += [f"v_pk_fma_f32 {vr(A + p, 2)}, {vr(Y2 + p, 2)}, {vr(U2 + p, 2)}, {vr(A + p, 2)}"]
        out += [f"v_pk_add_f32 {vr(U1 + o, 2)}, {vr(U1 + o, 2)}, {sr(ONE, 2)}",
                f"v_pk_add_f32 {vr(U2 + o, 2)}, {vr(U2 + o, 2)}, {sr(ONE, 2)}",
                f"v_rcp_f32 v{U1 + o}, v{U1 + o}", f"v_rcp_f32 v{U1 + o + 1}, v{U1 + o + 1}",
                f"v_rcp_f32 v{U2 + o}, v{U2 + o}", f"v_rcp_f32 v{U2 + o + 1}, v{U2 + o + 1}"]
        prev = m
    p = 2 * prev
    tail = [f"v_pk_fma_f32 {vr(A + p, 2)}, {vr(Y1 + p, 2)}, {vr(U1 + p, 2)}, {vr(A + p, 2)}",
            f"v_pk_fma_f32 {vr(A + p, 2)}, {vr(Y2 + p, 2)}, {vr(U2 + p, 2)}, {vr(A + p, 2)}"]
    return out, tail

def lut_issue(R, y, h, regs):
    out = []
    for k, i in enumerate(regs):
        out += [f"v_mad_u32_u16 v{y + i}, v{y + i}, 2, s{R['sLUT']} op_sel:[1,0,0,0]",
                f"ds_read_u16_d16_hi v{h + k}, v{y + i}"]
    return out
```

```python
import argparse
import struct
import sys

sys.path.insert(0, "gen")
from gen import Asm, Stream, f32, srd, vr, sr, HEADER, kd, NAME
import stream2 as S2

N, E = 25000, 400000
NCH, CH = 250, 1600
BN, NB = 98, 256
BMAGIC, BSHIFT = 42800, 22
REC, TAB, TABSTR = 0, 0x320000, 1152
W2F, W1F, LUTG = 0x3A0000, 0x3B0000, 0x3C0000
AOFF, SAVE = 0x400000, 0x2000000
STAMP = 0x4000000
WS_BYTES = 0x5000000
LOG2E = 1.4426950408889634
LN2 = 0.6931471805599453
NGEMM = 196
ID_GEMM = NCH
ID_W2 = ID_GEMM + NGEMM
ID_W1 = ID_W2 + 8
ID_SINK = ID_W1 + 8
LUT_SHIFT = 64
LUT_N = 85 * 512
ID_LUT = ID_SINK + 1
N_LUTWG = (LUT_N // 8 + 511) // 512
PADVAL_EXP = 24


def bf16_bits(x):
    return struct.unpack("<I", struct.pack("<f", x))[0] >> 16


def dpp_scan(a, v):
    for sh in (1, 2, 4, 8):
        a("s_nop 1")
        a(f"v_add_u32_dpp v{v}, v{v}, v{v} row_shr:{sh} row_mask:0xf bank_mask:0xf")
    a("s_nop 1")
    a(f"v_add_u32_dpp v{v}, v{v}, v{v} row_bcast:15 row_mask:0xa bank_mask:0xf")
    a("s_nop 1")
    a(f"v_add_u32_dpp v{v}, v{v}, v{v} row_bcast:31 row_mask:0xc bank_mask:0xf")


PST = 50


def pstamp(a, opt, k, wait=True):
    if opt.pstamps:
        a(f"s_memtime s[{PST + 2 * k}:{PST + 2 * k + 1}]")
        if k == 0:
            a(f"s_memrealtime s[{PST + 16}:{PST + 17}]")
        if wait:
            a("s_waitcnt lgkmcnt(0)")


def pstamp_out(a, opt, wsl, wsh):
    if not opt.pstamps:
        return
    a("s_mov_b64 exec, -1")
    a(f"s_memtime s[{PST + 12}:{PST + 13}]")
    a("s_waitcnt vmcnt(0)")
    a(f"s_memtime s[{PST + 14}:{PST + 15}]")
    a(f"s_memrealtime s[{PST + 18}:{PST + 19}]")
    a("s_waitcnt lgkmcnt(0)")
    a(f"s_getreg_b32 s{PST + 20}, hwreg(HW_REG_HW_ID)")
    a(f"s_getreg_b32 s{PST + 21}, hwreg(HW_REG_XCC_ID)")
    srd(a, 44, wsl, wsh, WS_BYTES)
    a("v_lshrrev_b32 v1, 6, v127")
    a("s_nop 0")
    a("v_readfirstlane_b32 s3, v1")
    a("s_lshl_b32 s48, s2, 3")
    a("s_add_u32 s48, s48, s3")
    a("s_lshl_b32 s48, s48, 7")
    a(f"s_add_u32 s48, s48, {STAMP + 0x100000:#x}")
    a("v_mov_b32 v0, 0")
    for k in range(22):
        a(f"v_mov_b32 v1, s{PST + k}")
        a(f"buffer_store_dword v1, v0, s[44:47], s48 offen offset:{4 * k}")


def NT(opt):
    return " nt" if opt.ntin else ""


def wsbase(a, opt, lo):
    if opt.wsbase:
        a(f"s_add_u32 s{lo}, s{lo}, {opt.wsbase:#x}")
        a(f"s_addc_u32 s{lo + 1}, s{lo + 1}, 0")


def gen_prep(a, opt):
    nid = ID_LUT + (N_LUTWG if opt.lut else 0)
    a.label("prep_kernel")
    pstamp(a, opt, 0, False)
    a(f"s_cmp_ge_u32 s2, {nid}")
    a("s_cbranch_scc1 prep_done")
    a(f"s_cmp_ge_u32 s2, {ID_W2}")
    a("s_cbranch_scc1 prep_misc")
    a(f"s_cmp_lt_u32 s2, {ID_GEMM}")
    a("s_cbranch_scc1 prep_bin")
    ACC, XF, WR = 0, 64, 80
    vTA0, vTA1, vSO, vO, vP, vL = 96, 97, 98, 100, 108, 110
    if opt.pstamps:
        a("v_mov_b32 v127, v0")
    a("s_load_dwordx2 s[4:5], s[0:1], 0")
    a("s_load_dwordx2 s[6:7], s[0:1], 32")
    a("s_load_dwordx2 s[8:9], s[0:1], 80")
    a(f"s_sub_u32 s3, s2, {ID_GEMM}")
    a(f"v_lshrrev_b32 v{vP}, 6, v0")
    a(f"v_and_b32 v{vL}, 63, v0")
    a(f"v_readfirstlane_b32 s30, v{vP}")
    a("s_lshl_b32 s28, s3, 7")
    a("s_lshl_b32 s31, s30, 4")
    a("s_add_u32 s28, s28, s31")
    a(f"v_lshrrev_b32 v{vP}, 5, v{vL}")
    a(f"v_lshlrev_b32 v{vP + 1}, 1, v{vP}")
    a(f"v_and_b32 v{vO}, 31, v{vL}")
    a(f"v_xor_b32 v{vO}, v{vO}, v{vP + 1}")
    a(f"v_lshlrev_b32 v{vO}, 4, v{vO}")
    a(f"v_lshl_add_u32 v{vO}, v{vP}, 9, v{vO}")
    a("s_lshr_b32 s31, s30, 1")
    a("s_lshl_b32 s31, s31, 14")
    a("s_and_b32 s32, s30, 1")
    a("s_lshl_b32 s32, s32, 11")
    a("s_add_u32 s31, s31, s32")
    a(f"s_mul_i32 s33, s30, {8 * 1088}")
    a("s_lshr_b32 s29, s3, 3")
    a(f"v_and_b32 v{vP}, 15, v{vL}")
    a(f"v_lshrrev_b32 v{vP + 1}, 4, v{vL}")
    a(f"v_add_u32 v{vO + 1}, s28, v{vP}")
    a(f"v_lshlrev_b32 v{vO + 1}, 8, v{vO + 1}")
    a(f"v_lshl_add_u32 v{vO + 1}, v{vP + 1}, 4, v{vO + 1}")
    a("s_waitcnt lgkmcnt(0)")
    wsbase(a, opt, 8)
    srd(a, 12, 4, 5, N * 256)
    srd(a, 16, 6, 7, 257 * 512)

    def wdma():
        a("s_and_b32 s34, s29, 7")
        a("s_lshr_b32 s35, s34, 1")
        a("s_lshl_b32 s35, s35, 12")
        a("s_and_b32 s36, s34, 1")
        a("s_lshl_b32 s36, s36, 10")
        a("s_add_u32 s35, s35, s36")
        a("s_mul_i32 s34, s34, 1088")
        a("s_add_u32 m0, s33, s34")
        a("s_add_u32 s35, s35, s31")
        a(f"buffer_load_dwordx4 v{vO}, s[16:19], s35 offen lds")
        a("s_add_u32 s29, s29, 1")

    wdma()
    for s in range(4):
        a(f"buffer_load_dwordx4 {vr(XF + 4 * s, 4)}, v{vO + 1}, s[12:15], 0 offen offset:{s * 64}{NT(opt)}")
    for ii in range(7):
        wdma()
    a(f"v_lshl_add_u32 v{vSO}, v{vP + 1}, 2, s28")
    a(f"v_lshlrev_b32 v{vSO}, 9, v{vSO}")
    a(f"v_lshl_add_u32 v{vSO}, v{vP}, 4, v{vSO}")
    a(f"v_lshrrev_b32 v{vO + 2}, 3, v{vP}")
    a(f"v_lshl_add_u32 v{vO + 2}, v{vP + 1}, 1, v{vO + 2}")
    a(f"v_mul_u32_u24 v{vTA0}, 1088, v{vO + 2}")
    a(f"v_and_b32 v{vO + 2}, 3, v{vP}")
    a(f"v_lshl_add_u32 v{vTA0}, v{vO + 2}, 3, v{vTA0}")
    a(f"v_bfe_u32 v{vO + 2}, v{vP}, 2, 1")
    a(f"v_mul_u32_u24 v{vO + 3}, 480, v{vO + 2}")
    a(f"v_add_u32 v{vTA1}, v{vO + 3}, v{vTA0}")
    a(f"v_mul_u32_u24 v{vO + 3}, 544, v{vO + 2}")
    a(f"v_add_u32 v{vTA0}, v{vO + 3}, v{vTA0}")
    a(f"s_add_u32 s20, s8, {AOFF:#x}")
    a("s_addc_u32 s21, s9, 0")
    a("s_and_b32 s21, s21, 0xffff")
    a(f"s_mov_b32 s22, {N * 512:#x}")
    a("s_mov_b32 s23, 0x20000")
    a(f"s_mov_b32 s36, {f32(LOG2E)}")
    hs = LOG2E * 2.0 ** -LUT_SHIFT if opt.lut else LOG2E
    a(f"s_mov_b32 s38, {f32(hs)}")
    a("s_mov_b32 s40, 0x07060100")
    a("s_mov_b32 s41, 0x07060302")
    pstamp(a, opt, 1)
    a("s_waitcnt vmcnt(0)")
    pstamp(a, opt, 2)
    a("s_barrier")
    pstamp(a, opt, 3)
    st = Stream(a)
    frs = [(hp, s, c) for hp in range(2) for s in range(4) for c in range(8)]

    def wread(n):
        hp, s, c = frs[n]
        blk = 8 * hp + c
        ad = vTA1 if blk & 1 else vTA0
        for rd in range(2):
            st.emit(f"ds_read_b64_tr_b16 {vr(WR + 4 * (n % 4) + 2 * rd, 2)}, v{ad} offset:{(16 * s + 8 * rd) * 1088 + blk * 32}")

    def encode(hp):
        out = []
        for cc in range(8):
            d = ACC + 32 * hp + 4 * cc
            for m in range(4):
                out.append(f"v_mul_f32 v{d + m}, s{38 if cc & 1 else 36}, v{d + m}")
        for j in range(4):
            r = ACC + 32 * hp + j
            o = vO + 4 * (j & 1)
            out += [f"v_cvt_pk_bf16_f32 v{vP}, v{r}, v{r + 8}",
                    f"v_cvt_pk_bf16_f32 v{vP + 1}, v{r + 16}, v{r + 24}",
                    f"v_perm_b32 v{o}, v{r + 4}, v{vP}, s40",
                    f"v_perm_b32 v{o + 1}, v{r + 12}, v{vP}, s41",
                    f"v_perm_b32 v{o + 2}, v{r + 20}, v{vP + 1}, s40",
                    f"v_perm_b32 v{o + 3}, v{r + 28}, v{vP + 1}, s41"]
            if not opt.nostore:
                out.append(f"buffer_store_dwordx4 {vr(o, 4)}, v{vSO}, s[20:23], 0 offen offset:{j * 512 + hp * 256}{opt.stmod}")
        return out

    for n in range(3):
        wread(n)
    enc = []
    for n, (hp, s, c) in enumerate(frs):
        if n + 3 < len(frs):
            wread(n + 3)
        d = ACC + 32 * hp + 4 * c
        st.emit(f"v_mfma_f32_16x16x32_bf16 {vr(d, 4)}, {vr(XF + 4 * s, 4)}, {vr(WR + 4 * (n % 4), 4)}, {vr(d, 4) if s else '0'}")
        if n == 33:
            enc = encode(0)
        for x in enc[:3]:
            a(x)
        enc = enc[3:]
    assert not enc
    pstamp(a, opt, 4)
    a("s_nop 7")
    for x in encode(1):
        a(x)
    pstamp_out(a, opt, 8, 9)
    a.label("prep_done")
    a("s_endpgm")

    HIST, STG = 0, 1024
    a.label("prep_bin")
    a("s_load_dwordx4 s[4:7], s[0:1], 8")
    a("s_load_dwordx2 s[8:9], s[0:1], 24")
    a("s_load_dwordx2 s[10:11], s[0:1], 80")
    a("s_mov_b32 s3, s2")
    if opt.pstamps:
        a("v_mov_b32 v127, v0")
    a("v_lshlrev_b32 v1, 3, v0")
    a("v_lshlrev_b32 v4, 4, v0")
    a("v_lshlrev_b32 v3, 2, v0")
    a("v_mov_b32 v2, 0")
    a("v_cmpx_gt_u32 vcc, 256, v0")
    a(f"ds_write_b32 v3, v2 offset:{HIST}")
    a("s_mov_b64 exec, -1")
    a("s_mul_i32 s28, s3, 6400")
    a("s_mul_i32 s29, s3, 3200")
    a("s_waitcnt lgkmcnt(0)")
    wsbase(a, opt, 10)
    srd(a, 12, 8, 9, E * 4)
    srd(a, 16, 6, 7, E * 4)
    srd(a, 20, 4, 5, E * 2)
    srd(a, 24, 10, 11, WS_BYTES)
    a("buffer_load_dwordx4 v[8:11], v4, s[12:15], s28 offen" + NT(opt))
    a("buffer_load_dwordx4 v[12:15], v4, s[16:19], s28 offen" + NT(opt))
    a("buffer_load_dwordx2 v[16:17], v1, s[20:23], s29 offen" + NT(opt))
    a("s_barrier")
    a(f"v_cmpx_gt_u32 vcc, {CH // 4}, v0")
    a("s_mov_b64 s[38:39], exec")
    a("v_mov_b32 v5, 1")
    pstamp(a, opt, 1)
    a("s_waitcnt vmcnt(2)")
    pstamp(a, opt, 2)
    for i in range(4):
        d, g, dl = 8 + i, 20 + i, 24 + i
        a(f"v_mul_u32_u24 v{g}, {BMAGIC}, v{d}")
        a(f"v_lshrrev_b32 v{g}, {BSHIFT}, v{g}")
        a(f"v_mul_u32_u24 v{dl}, {BN}, v{g}")
        a(f"v_lshlrev_b32 v{g}, 2, v{g}")
        a(f"v_sub_u32 v{dl}, v{d}, v{dl}")
        a(f"ds_add_rtn_u32 v{28 + i}, v{g}, v5 offset:{HIST}")
    a("s_waitcnt vmcnt(0)")
    for i in range(4):
        a(f"v_lshl_or_b32 v{32 + 2 * i}, v{12 + i}, 9, v{24 + i}")
        if i & 1:
            a(f"v_and_b32 v{33 + 2 * i}, 0xffff0000, v{16 + i // 2}")
        else:
            a(f"v_lshlrev_b32 v{33 + 2 * i}, 16, v{16 + i // 2}")
    a("s_mov_b64 exec, -1")
    a("v_cmp_gt_u32 vcc, 64, v0")
    a("s_waitcnt lgkmcnt(0)")
    a("s_barrier")
    pstamp(a, opt, 3)
    a("s_cbranch_vccz bin_noscan")
    a(f"ds_read_b128 v[40:43], v4 offset:{HIST}")
    a(f"s_mul_i32 s28, s3, {TABSTR}")
    a(f"s_add_u32 s28, s28, {TAB:#x}")
    a("s_waitcnt lgkmcnt(0)")
    a("v_add_u32 v45, v40, v41")
    a("v_add_u32 v46, v45, v42")
    a("v_add_u32 v47, v46, v43")
    a("v_mov_b32 v48, v47")
    dpp_scan(a, 48)
    a("v_sub_u32 v44, v48, v47")
    a("v_add_u32 v47, v44, v46")
    a("v_add_u32 v46, v44, v45")
    a("v_add_u32 v45, v44, v40")
    a(f"ds_write_b128 v4, v[44:47] offset:{HIST}")
    for i in range(4):
        a(f"v_lshl_or_b32 v{40 + i}, v{40 + i}, 16, v{44 + i}")
    a("buffer_store_dwordx4 v[40:43], v4, s[24:27], s28 offen")
    a("s_waitcnt lgkmcnt(0)")
    a.label("bin_noscan")
    a("s_barrier")
    pstamp(a, opt, 4)
    a("s_mov_b64 exec, s[38:39]")
    for i in range(4):
        a(f"ds_read_b32 v{20 + i}, v{20 + i} offset:{HIST}")
    for i in range(4):
        a("s_waitcnt lgkmcnt(3)")
        a(f"v_add_lshl_u32 v{20 + i}, v{20 + i}, v{28 + i}, 3")
        a(f"ds_write_b64 v{20 + i}, v[{32 + 2 * i}:{33 + 2 * i}] offset:{STG}")
    a("s_mov_b64 exec, -1")
    a(f"s_mul_i32 s28, s3, {CH * 8}")
    a("s_waitcnt lgkmcnt(0)")
    a("s_barrier")
    pstamp(a, opt, 5)
    a(f"ds_read_b128 v[8:11], v4 offset:{STG}")
    a("v_add_u32 v5, 8192, v4")
    a("s_waitcnt lgkmcnt(0)")
    a("buffer_store_dwordx4 v[8:11], v4, s[24:27], s28 offen")
    a(f"v_cmpx_gt_u32 vcc, {CH * 8 // 16 - 512}, v0")
    a("s_cbranch_execz bin_done")
    a(f"ds_read_b128 v[12:15], v5 offset:{STG}")
    a("s_waitcnt lgkmcnt(0)")
    a("buffer_store_dwordx4 v[12:15], v5, s[24:27], s28 offen")
    a.label("bin_done")
    pstamp_out(a, opt, 10, 11)
    a("s_endpgm")

    a.label("prep_misc")
    a("s_load_dwordx2 s[4:5], s[0:1], 32")
    a("s_load_dwordx2 s[6:7], s[0:1], 48")
    a("s_load_dwordx2 s[10:11], s[0:1], 80")
    a("v_lshlrev_b32 v4, 4, v0")
    a("s_waitcnt lgkmcnt(0)")
    wsbase(a, opt, 10)
    srd(a, 24, 10, 11, WS_BYTES)
    a(f"s_cmp_eq_u32 s2, {ID_SINK}")
    a("s_cbranch_scc1 prep_sink")
    if opt.lut:
        a(f"s_cmp_ge_u32 s2, {ID_LUT}")
        a("s_cbranch_scc1 prep_lut")
    a(f"s_cmp_ge_u32 s2, {ID_W1}")
    a("s_cbranch_scc1 prep_w1")
    srd(a, 12, 6, 7, 256 * 256)
    a(f"s_sub_u32 s28, s2, {ID_W2}")
    a("v_lshrrev_b32 v1, 6, v0")
    a("s_lshl_b32 s31, s28, 3")
    a("v_add_u32 v1, s31, v1")
    a("v_and_b32 v2, 31, v0")
    a("v_bfe_u32 v3, v0, 5, 1")
    a("v_and_b32 v5, 7, v1")
    a("v_lshl_add_u32 v5, v5, 1, v3")
    a("v_bfe_u32 v6, v1, 3, 1")
    a("v_lshl_add_u32 v5, v6, 7, v5")
    a("v_lshlrev_b32 v5, 8, v5")
    a("v_lshrrev_b32 v6, 4, v1")
    a("v_lshl_add_u32 v5, v6, 6, v5")
    a("v_bfe_u32 v6, v2, 2, 1")
    a("v_lshl_add_u32 v5, v6, 5, v5")
    a("v_lshrrev_b32 v6, 3, v2")
    a("v_lshl_add_u32 v5, v6, 3, v5")
    a("v_and_b32 v6, 3, v2")
    a("v_lshl_add_u32 v5, v6, 1, v5")
    for t, c in enumerate((0, 2, 4, 6, 1, 3, 5, 7)):
        a(f"s_mov_b32 s30, {c * 4096}")
        a(f"buffer_load_ushort v{8 + t}, v5, s[12:15], s30 offen")
    a("s_lshl_b32 s33, s28, 13")
    a(f"s_add_u32 s33, s33, {W2F:#x}")
    a("s_waitcnt vmcnt(0)")
    for t in range(4):
        a(f"v_lshl_or_b32 v{16 + t}, v{9 + 2 * t}, 16, v{8 + 2 * t}")
    a("buffer_store_dwordx4 v[16:19], v4, s[24:27], s33 offen")
    a("s_endpgm")
    a.label("prep_w1")
    srd(a, 12, 4, 5, 257 * 512)
    a(f"s_sub_u32 s28, s2, {ID_W1}")
    a("v_lshrrev_b32 v1, 6, v0")
    a("s_lshl_b32 s31, s28, 3")
    a("v_add_u32 v1, s31, v1")
    a("v_bfe_u32 v2, v0, 3, 1")
    a("v_lshrrev_b32 v3, 2, v1")
    a("v_lshl_add_u32 v2, v3, 1, v2")
    a("v_and_b32 v5, 15, v2")
    a("v_lshrrev_b32 v2, 4, v2")
    a("v_lshl_add_u32 v5, v2, 7, v5")
    a("v_and_b32 v2, 3, v0")
    a("v_lshl_add_u32 v5, v2, 5, v5")
    a("v_bfe_u32 v2, v0, 2, 1")
    a("v_lshl_add_u32 v5, v2, 4, v5")
    a("v_lshlrev_b32 v5, 1, v5")
    a("v_and_b32 v2, 3, v1")
    a("v_lshl_add_u32 v5, v2, 14, v5")
    a("v_bfe_u32 v2, v0, 4, 2")
    a("v_lshl_add_u32 v5, v2, 12, v5")
    a("s_mov_b32 s30, 65536")
    for t in range(8):
        a(f"buffer_load_ushort v{8 + t}, v5, s[12:15], s30 offen offset:{t * 512}")
    a("s_lshl_b32 s33, s28, 13")
    a(f"s_add_u32 s33, s33, {W1F:#x}")
    a("s_waitcnt vmcnt(0)")
    for t in range(4):
        a(f"v_lshl_or_b32 v{16 + t}, v{9 + 2 * t}, 16, v{8 + 2 * t}")
    a("buffer_store_dwordx4 v[16:19], v4, s[24:27], s33 offen")
    a("s_endpgm")
    a.label("prep_sink")
    lo = bf16_bits(-2.0 ** PADVAL_EXP)
    hi = bf16_bits(-2.0 ** (PADVAL_EXP - (LUT_SHIFT if opt.lut else 0)))
    for i in range(4):
        a(f"v_mov_b32 v{8 + i}, {(hi << 16) | lo:#x}")
    a(f"s_mov_b32 s28, {AOFF + N * 512:#x}")
    a("v_cmpx_gt_u32 vcc, 32, v0")
    a("s_cbranch_execz prep_sink_done")
    a("buffer_store_dwordx4 v[8:11], v4, s[24:27], s28 offen")
    a.label("prep_sink_done")
    a("s_endpgm")
    if opt.lut:
        a.label("prep_lut")
        a(f"s_sub_u32 s28, s2, {ID_LUT}")
        a("s_lshl_b32 s29, s28, 12")
        a("v_lshl_add_u32 v1, v0, 3, s29")
        a(f"s_mov_b32 s30, {f32(2.0 ** LUT_SHIFT)}")
        a(f"s_mov_b32 s31, {f32(LN2)}")
        for t in range(8):
            a(f"v_add_u32 v2, {t}, v1")
            a("v_lshlrev_b32 v2, 16, v2")
            a("v_or_b32 v2, 0x8000, v2")
            a(f"v_mul_f32 v{8 + t}, s30, v2")
            a(f"v_exp_f32 v3, -v{8 + t}")
            a(f"v_mul_f32 v{8 + t}, s31, v{8 + t}")
            a("v_add_f32 v3, 1.0, v3")
            a("v_rcp_f32 v3, v3")
            a("s_nop 0")
            a(f"v_mul_f32 v{8 + t}, v{8 + t}, v3")
        for t in range(4):
            a(f"v_cvt_pk_bf16_f32 v{16 + t}, v{8 + 2 * t}, v{9 + 2 * t}")
        a("s_lshl_b32 s29, s28, 13")
        a(f"s_add_u32 s29, s29, {LUTG:#x}")
        a("buffer_store_dwordx4 v[16:19], v4, s[24:27], s29 offen")
        a("s_endpgm")
    return dict(vgpr=128 if opt.pstamps else 112, sgpr=80 if opt.pstamps else 48, lds=64 * 1088, grid=nid, block=512)


LCAP = 2304
CAP1, CAP2 = 2048, 512
NQ, NTASK = 25, 50
SROW = 528
LIST = 0
PADA = LIST + LCAP * 8
SR = PADA + 64
CT = SR + 100 * SROW
B1T = CT + 1024
DEG = B1T + 1024
DH = DEG + 512
RS = DH + 256
DEGT = RS + 32
NBT = DEGT + 512
SN = NBT + 512
SD = SN + 512
TT = SD + 512
LEND = TT + 128
LUTO = 163840 - LUT_N * 2
assert LUTO >= LEND
XSZ = 28 * 1088
LUT_EARLY = (LUT_N * 2 - XSZ) // 1024
PADREC = N * 512

G, R, B, C, ACC = 0, 32, 48, 56, 64
Y1, Y2, U1, U2 = 72, 80, 88, 96
vLP, vLG, vLAD, vSA, vTT, vNC, vCUR, vREM = range(104, 112)
vTID, vLANE, vCHB, vCADR, vG4, vS2, vRA = range(112, 119)
vT = 120
sA, sX, sWS, sOUT = 4, 8, 12, 16
sTMP = 20
sQ, sW, sROUND, sCAP, sMORE, sPOFF, sPREM, sPINC, sSEL1, sPR, sPG, sCREM, sCI, sCPASS = range(24, 38)
sSEL, sLUT = 38, 39
sK, sONE, sSCL, sSCH = 40, 42, 44, 46
sX0, sX1, sX2, sX3 = 48, 49, 50, 51
sW1P, sB1P, sB2P = 52, 54, 56
sFIFO, sFCNT, sPI = 60, 62, 63
sST = 64


def regs(opt):
    if opt.lut:
        return dict(B=B, C=C, ACC=ACC, Y1=Y1, Y2=Y2, U1=U1, U2=U1 + 4, HL=U2, sSEL=sSEL, sK=sK, sONE=sONE, sLUT=sLUT)
    return dict(B=B, C=C, ACC=ACC, Y1=Y1, Y2=Y2, U1=U1, U2=U2, sSEL=sSEL, sK=sK, sONE=sONE, sLUT=sLUT)


def stamp(a, opt, k, wait=False):
    if opt.stamps:
        a(f"s_memtime s[{sST + 2 * k}:{sST + 2 * k + 1}]")
        if k == 0:
            a(f"s_memrealtime s[{sST + 16}:{sST + 17}]")
        if wait:
            a("s_waitcnt lgkmcnt(0)")


def stamp_out(a, opt):
    if not opt.stamps:
        return
    a(f"s_memtime s[{sST + 14}:{sST + 15}]")
    a(f"s_memrealtime s[{sST + 18}:{sST + 19}]")
    a("s_waitcnt vmcnt(0) lgkmcnt(0)")
    a(f"s_getreg_b32 s{sST + 20}, hwreg(HW_REG_HW_ID)")
    a(f"s_getreg_b32 s{sST + 21}, hwreg(HW_REG_XCC_ID)")
    a(f"s_lshl_b32 s{sX0}, s{sQ}, 4")
    a(f"s_add_u32 s{sX0}, s{sX0}, s{sW}")
    a(f"s_lshl_b32 s{sX0}, s{sX0}, 7")
    a(f"s_add_u32 s{sX0}, s{sX0}, {STAMP:#x}")
    a("v_mov_b32 v0, 0")
    for k in range(23):
        a(f"v_mov_b32 v1, s{sST + k}")
        a(f"buffer_store_dword v1, v0, {sr(sWS, 4)}, s{sX0} offen offset:{4 * k}")


def decode(a, i, t, p):
    a(f"s_cmp_ge_u32 s{i}, {NQ}")
    a(f"s_cselect_b32 s{p}, 1, 0")
    a(f"s_cselect_b32 s{t}, {NQ}, 0")
    a(f"s_sub_u32 s{t}, s{i}, s{t}")


def hop_p(a, tag, claim=True, dyn=True):
    if claim:
        if dyn:
            a("s_mov_b64 exec, 1")
            a(f"v_mov_b32 v{vT}, 1")
            a(f"ds_add_rtn_u32 v{vT}, v{vRA}, v{vT} offset:12")
            a("s_mov_b64 exec, -1")
            a("s_waitcnt lgkmcnt(0)")
            a(f"v_readfirstlane_b32 s{sPI}, v{vT}")
        else:
            a(f"s_add_u32 s{sPI}, s{sPI}, 16")
        a(f"s_mov_b32 s{sX0}, s{sPI}")
        a(f"s_mov_b32 s{sX1}, 0")
        a(f"s_lshl_b64 {sr(sX0, 2)}, {sr(sX0, 2)}, s{sFCNT}")
        a(f"s_or_b64 {sr(sFIFO, 2)}, {sr(sFIFO, 2)}, {sr(sX0, 2)}")
        a(f"s_add_u32 s{sFCNT}, s{sFCNT}, 8")
    a(f"s_cmp_ge_u32 s{sPI}, {NTASK}")
    a(f"s_cbranch_scc1 hp_end_{tag}")
    decode(a, sPI, sX0, sX1)
    a(f"v_readlane_b32 s{sX2}, v{vTT}, s{sX0}")
    a(f"s_lshl_b32 s{sPR}, s{sX1}, 8")
    a(f"s_mov_b32 s{sPINC}, 64")
    a(f"s_and_b32 s{sPOFF}, s{sX2}, 0xffff")
    a(f"s_lshr_b32 s{sPREM}, s{sX2}, 16")
    a(f"s_branch hp_out_{tag}")
    a.label(f"hp_end_{tag}")
    a(f"s_mov_b32 s{sPOFF}, {PADA - LIST}")
    a(f"s_mov_b32 s{sPINC}, 0")
    a(f"s_mov_b32 s{sPREM}, 0x7fffffff")
    a.label(f"hp_out_{tag}")


def switch_in(a, opt, tag):
    decode(a, sCI, sX0, sCPASS)
    a(f"s_lshl_b32 s{sX1}, s{sX0}, 4")
    a(f"v_add_u32 v{vT}, s{sX1}, v{vG4}")
    a(f"ds_read_b32 v{vNC}, v{vT}")
    a(f"v_readlane_b32 s{sX2}, v{vTT}, s{sX0}")
    a(f"s_lshl_b32 s{sX1}, s{sCPASS}, 9")
    a(f"v_add_u32 v{vT}, s{sX1}, v{vCADR}")
    a(f"s_lshr_b32 s{sCREM}, s{sX2}, 16")
    a(f"ds_read_b128 {vr(B, 4)}, v{vT} offset:{B1T - CT}")
    a(f"ds_read_b128 {vr(B + 4, 4)}, v{vT} offset:{B1T - CT + 16}")
    a(f"ds_read_b128 {vr(C, 4)}, v{vT}")
    a(f"ds_read_b128 {vr(C + 4, 4)}, v{vT} offset:16")
    a(f"s_lshl_b32 s{sX1}, s{sCPASS}, 8")
    a(f"s_add_u32 s{sX1}, s{sX1}, {SR}")
    a(f"v_add_u32 v{vSA}, s{sX1}, v{vLP}")
    a(f"s_mov_b32 s{sX1}, {SROW}")
    if opt.prio:
        for lvl, lim in ((3, 13), (2, 25), (1, 38)):
            a(f"s_setprio {lvl}")
            a(f"s_cmp_lt_u32 s{sCI}, {lim}")
            a(f"s_cbranch_scc1 prio_{tag}")
        a("s_setprio 0")
        a.label(f"prio_{tag}")
    a("s_waitcnt lgkmcnt(4)")
    a(f"v_mad_u32_u24 v{vSA}, v{vNC}, s{sX1}, v{vSA}")
    a(f"ds_read_b128 {vr(Y1, 4)}, v{vSA}")
    for i in range(8):
        a(f"v_mov_b32 v{ACC + i}, 0")
    a("s_waitcnt lgkmcnt(0)")
    for i in range(8):
        a(f"v_dot2_f32_bf16 v{B + i}, v{Y1 + i // 2}, s{sSEL1 if i & 1 else sSEL}, v{B + i}")


def flush(a, tag):
    a(f"s_or_b32 s{sX0}, s{sROUND}, s{sMORE}")
    a(f"s_cbranch_scc0 fl_plain_{tag}")
    a(f"s_mul_i32 s{sX0}, s{sQ}, {100 * 1024}")
    a(f"s_lshl_b32 s{sX1}, s{sCPASS}, 9")
    a(f"s_add_u32 s{sX0}, s{sX0}, s{sX1}")
    a(f"s_add_u32 s{sX0}, s{sX0}, {SAVE:#x}")
    a(f"v_lshlrev_b32 v{vT}, 10, v{vNC}")
    a(f"v_lshl_add_u32 v{vT}, v{vLP}, 1, v{vT}")
    a(f"s_cmp_eq_u32 s{sROUND}, 0")
    a(f"s_cbranch_scc1 fl_noload_{tag}")
    a(f"buffer_load_dwordx4 {vr(Y1, 4)}, v{vT}, {sr(sWS, 4)}, s{sX0} offen sc0 sc1")
    a(f"buffer_load_dwordx4 {vr(Y1 + 4, 4)}, v{vT}, {sr(sWS, 4)}, s{sX0} offen offset:16 sc0 sc1")
    a("s_waitcnt vmcnt(0)")
    for i in range(8):
        a(f"v_add_f32 v{ACC + i}, v{ACC + i}, v{Y1 + i}")
    a.label(f"fl_noload_{tag}")
    a(f"buffer_store_dwordx4 {vr(ACC, 4)}, v{vT}, {sr(sWS, 4)}, s{sX0} offen sc0 sc1")
    a(f"buffer_store_dwordx4 {vr(ACC + 4, 4)}, v{vT}, {sr(sWS, 4)}, s{sX0} offen offset:16 sc0 sc1")
    a("s_waitcnt vmcnt(0)")
    a.label(f"fl_plain_{tag}")
    for m in range(4):
        a(f"v_pk_mul_f32 {vr(ACC + 2 * m, 2)}, {vr(ACC + 2 * m, 2)}, {sr(sSCL if m < 2 else sSCH, 2)}")
    for m in range(4):
        a(f"v_cvt_pk_bf16_f32 v{Y1 + m}, v{ACC + 2 * m}, v{ACC + 2 * m + 1}")
    a(f"ds_write_b128 v{vSA}, {vr(Y1, 4)}")


def rec_read(slot):
    return [f"v_add_u32 v{vLAD}, s{sPOFF}, v{vLG}",
            f"ds_read2_b64 {vr(R + 4 * slot, 4)}, v{vLAD} offset0:0 offset1:4"]


EXP = set()


def gathers(slot):
    r = R + 4 * slot
    if "samerow" in EXP:
        return [f"v_and_b32 v{r}, 0xff, v{vLP}", f"v_and_b32 v{r + 2}, 0xff, v{vLP}",
                f"buffer_load_dwordx4 {vr(G + 8 * slot, 4)}, v{r}, {sr(sA, 4)}, s{sPG} offen",
                f"buffer_load_dwordx4 {vr(G + 8 * slot + 4, 4)}, v{r + 2}, {sr(sA, 4)}, s{sPG} offen"]
    return [f"v_add_u32 v{r}, v{r}, v{vLP}",
            f"v_add_u32 v{r + 2}, v{r + 2}, v{vLP}",
            f"buffer_load_dwordx4 {vr(G + 8 * slot, 4)}, v{r}, {sr(sA, 4)}, s{sPG} offen",
            f"buffer_load_dwordx4 {vr(G + 8 * slot + 4, 4)}, v{r + 2}, {sr(sA, 4)}, s{sPG} offen"]


def iteration(a, st, opt, ph):
    NR = opt.ring
    RG = regs(opt)
    for x in gathers((ph + NR - 1) % NR):
        st.emit(x)
    for x in S2.tpart(RG, Y1, R + 4 * ph) + S2.tpart(RG, Y2, R + 4 * ph + 2):
        st.emit(x)
    for x in rec_read(ph):
        st.emit(x)
    a(f"s_mov_b32 s{sPG}, s{sPR}")
    a(f"s_add_u32 s{sPOFF}, s{sPOFF}, s{sPINC}")
    a(f"s_sub_u32 s{sPREM}, s{sPREM}, 1")
    a(f"s_cmp_eq_u32 s{sPREM}, 0")
    a(f"s_cbranch_scc1 hookP_{ph}")
    a.label(f"backP_{ph}")
    a(f"s_waitcnt vmcnt({2 * (NR - 1)})")
    lo1, hi1 = S2.zpart(RG, Y1, G + 8 * ph)
    lo2, hi2 = S2.zpart(RG, Y2, G + 8 * ph + 4)
    act = S2.act_pair if opt.pair else S2.act_plain
    if opt.lut:
        HL = RG['HL']
        seq = hi1 + hi2 + S2.lut_issue(RG, Y1, HL, range(4, 8)) + S2.lut_issue(RG, Y2, HL + 4, range(4, 8)) + lo1 + lo2
        body, tail = act(RG, range(2))
        adds = [f"v_pk_add_f32 {vr(ACC + 4 + 2 * m, 2)}, {vr(ACC + 4 + 2 * m, 2)}, {vr(HL + 4 * e + 2 * m, 2)}"
                for e in range(2) for m in range(2)]
        seq += body + adds[:1] + tail + adds[1:]
    else:
        body, tail = act(RG, range(4))
        seq = lo1 + lo2 + hi1 + hi2 + body + [f"s_sub_u32 s{sCREM}, s{sCREM}, 1"] + tail
    for x in seq:
        st.emit(x)
    if opt.lut:
        a(f"s_sub_u32 s{sCREM}, s{sCREM}, 1")
    if opt.stamps:
        a(f"s_add_u32 s{sST + 22}, s{sST + 22}, 1")
    a(f"s_cmp_eq_u32 s{sCREM}, 0")
    a(f"s_cbranch_scc1 hookC_{ph}")
    a.label(f"backC_{ph}")


def lut_dma(a, first, count, tag):
    a(f"v_lshlrev_b32 v{vT + 5}, 4, v{vLANE}")
    a(f"s_lshr_b32 s{sX2}, s{sQ}, 3")
    a(f"s_add_u32 s{sX2}, s{sX2}, s{sW}")
    a(f"s_and_b32 s{sX2}, s{sX2}, 15")
    a(f"s_lshl_b32 s{sX0}, s{sX2}, 10")
    for k in range((count + 15) // 16):
        a(f"s_add_u32 s{sX1}, s{sX0}, {(first + k * 16) * 1024}")
        if (k + 1) * 16 > count:
            a(f"s_cmp_ge_u32 s{sX1}, {(first + count) * 1024}")
            a(f"s_cbranch_scc1 lut_done_{tag}")
        a(f"s_add_u32 m0, s{sX1}, {LUTO}")
        a(f"s_add_u32 s{sX1}, s{sX1}, {LUTG:#x}")
        a(f"buffer_load_dwordx4 v{vT + 5}, {sr(sWS, 4)}, s{sX1} offen lds")
    a.label(f"lut_done_{tag}")
    return count // 16


def gen_main(a, opt):
    kn = NAME + "_kernel"
    XO = 163840 - XSZ if opt.lut else (LEND + 63) // 64 * 64
    lds = 163840 if opt.lut else XO + XSZ
    NR = opt.ring
    a.label(kn)
    stamp(a, opt, 0)
    a(f"s_cmp_ge_u32 s2, {NB}")
    a("s_cbranch_scc1 main_done")
    a("s_load_dwordx2 s[12:13], s[0:1], 80")
    a("s_load_dwordx2 s[8:9], s[0:1], 0")
    a("s_load_dwordx4 s[52:55], s[0:1], 32")
    a("s_load_dwordx4 s[56:59], s[0:1], 56")
    a(f"v_mov_b32 v{vTID}, v0")
    a(f"v_lshrrev_b32 v{vT}, 6, v0")
    a(f"v_and_b32 v{vLANE}, 63, v0")
    a(f"v_readfirstlane_b32 s{sW}, v{vT}")
    a(f"s_mov_b32 s{sQ}, s2")
    a(f"s_mov_b32 s{sROUND}, 0")
    a(f"s_mov_b32 s{sCAP}, {CAP1}")
    a(f"s_mov_b32 s{sSEL}, 0x3f80")
    a(f"s_mov_b32 s{sSEL1}, 0x3f800000")
    a(f"s_mov_b32 s{sLUT}, {LUTO}")
    if opt.stamps:
        a(f"s_mov_b32 s{sST + 22}, 0")
    for r, v in ((sK, 2.0 ** -63), (sONE, 1.0)):
        a(f"s_mov_b32 s{r}, {f32(v)}")
        a(f"s_mov_b32 s{r + 1}, {f32(v)}")
    tsc = LN2 * (2.0 ** -63 if opt.pair else 1.0)
    for r, v in ((sSCL, tsc), (sSCH, 1.0 if opt.lut else tsc)):
        a(f"s_mov_b32 s{r}, {f32(v)}")
        a(f"s_mov_b32 s{r + 1}, {f32(v)}")
    a(f"v_lshrrev_b32 v{vT}, 2, v{vTID}")
    a(f"v_and_b32 v{vS2}, 3, v{vTID}")
    a(f"v_mul_u32_u24 v{vCHB}, {CH * 8}, v{vT}")
    a(f"v_mul_u32_u24 v{vT}, {TABSTR}, v{vT}")
    a(f"s_lshl_b32 s{sX0}, s{sQ}, 2")
    a(f"s_add_u32 s{sX0}, s{sX0}, {TAB:#x}")
    a(f"v_lshl_add_u32 v{vCHB}, v{vS2}, 4, v{vCHB}")
    a(f"v_lshlrev_b32 v{vS2}, 1, v{vS2}")
    a(f"v_and_b32 v{vLP}, 15, v{vLANE}")
    a(f"v_lshrrev_b32 v{vG4}, 4, v{vLANE}")
    a(f"v_mov_b32 v{vRA}, {RS}")
    a("s_waitcnt lgkmcnt(0)")
    wsbase(a, opt, 12)
    a("s_and_b32 s13, s13, 0xffff")
    a(f"s_mov_b32 s14, {WS_BYTES:#x}")
    a("s_mov_b32 s15, 0x20000")
    a(f"buffer_load_dword v{vCUR}, v{vT}, {sr(sWS, 4)}, s{sX0} offen")
    a("s_and_b32 s9, s9, 0xffff")
    a(f"s_mov_b32 s10, {N * 256:#x}")
    a("s_mov_b32 s11, 0x20000")
    a(f"s_add_u32 s{sA}, s12, {AOFF:#x}")
    a(f"s_addc_u32 s{sA + 1}, s13, 0")
    a(f"s_and_b32 s{sA + 1}, s{sA + 1}, 0xffff")
    a(f"s_mov_b32 s{sA + 2}, {(N + 1) * 512:#x}")
    a(f"s_mov_b32 s{sA + 3}, 0x20000")
    srd(a, sOUT, 58, 59, N * 256)
    a(f"v_lshlrev_b32 v{vCADR}, 5, v{vLP}")
    a(f"v_add_u32 v{vCADR}, {CT}, v{vCADR}")
    a(f"v_lshlrev_b32 v{vLG}, 3, v{vG4}")
    a.label("round_top")
    WB, XB, DB = 32, 48, 64
    a(f"v_lshrrev_b32 v{vT + 2}, 4, v{vLANE}")
    a(f"v_and_b32 v{vT + 3}, 15, v{vLANE}")
    a(f"v_xor_b32 v{vT}, v{vT + 2}, v{vT + 3}")
    a(f"v_lshlrev_b32 v{vT}, 4, v{vT}")
    a(f"v_lshl_add_u32 v{vT}, v{vT + 2}, 8, v{vT}")
    a(f"s_mul_i32 s{sX0}, s{sQ}, {BN * 256}")
    for k in range(2):
        if k:
            a(f"s_add_u32 s{sX1}, s{sW}, 16")
            a(f"s_min_u32 s{sX1}, s{sX1}, 24")
        else:
            a(f"s_mov_b32 s{sX1}, s{sW}")
        a(f"s_mul_i32 s{sX2}, s{sX1}, 1088")
        a(f"s_add_u32 m0, s{sX2}, {XO}")
        a(f"s_lshl_b32 s{sX1}, s{sX1}, 10")
        a(f"s_add_u32 s{sX1}, s{sX1}, s{sX0}")
        a(f"buffer_load_dwordx4 v{vT}, {sr(sX, 4)}, s{sX1} offen{NT(opt)} lds")
    a(f"v_lshlrev_b32 v{vT + 1}, 4, v{vLANE}")
    a(f"s_lshl_b32 s{sX1}, s{sW}, 12")
    a(f"s_add_u32 s{sX1}, s{sX1}, {W1F:#x}")
    for s in range(4):
        a(f"buffer_load_dwordx4 {vr(WB + 4 * s, 4)}, v{vT + 1}, {sr(sWS, 4)}, s{sX1} offen offset:{s * 1024}")
    a(f"v_lshlrev_b32 v{vT}, 4, v{vTID}")
    for i in range(4):
        a(f"v_mov_b32 v{vT + 4 + i}, {PADREC:#x}" if i % 2 == 0 else f"v_mov_b32 v{vT + 4 + i}, 0")
    a(f"ds_write_b128 v{vT}, {vr(vT + 4, 4)} offset:{LIST}")
    a(f"v_cmpx_gt_u32 vcc, {(SR - LIST - 16384) // 16}, v{vTID}")
    a(f"ds_write_b128 v{vT}, {vr(vT + 4, 4)} offset:{LIST + 16384}")
    a(f"v_cmpx_gt_u32 vcc, {(DEGT - DEG) // 16}, v{vTID}")
    a(f"v_mov_b32 v{vT + 4}, 0")
    a(f"v_mov_b32 v{vT + 6}, 0")
    a(f"v_add_u32 v{vT}, {DEG}, v{vT}")
    a(f"ds_write_b128 v{vT}, {vr(vT + 4, 4)}")
    a("s_mov_b64 exec, -1")
    a(f"s_cmp_lg_u32 s{sROUND}, 0")
    a("s_cbranch_scc1 have_table")
    a(f"s_cmp_lg_u32 s{sCAP}, {CAP1}")
    a("s_cbranch_scc1 have_table")
    a(f"v_lshlrev_b32 v{vLP}, 4, v{vLP}")
    a(f"v_lshlrev_b32 v{vG4}, 2, v{vG4}")
    a(f"v_add_u32 v{vG4}, {SN}, v{vG4}")
    a(f"s_cmp_lt_u32 s{sW}, 12")
    a("s_cbranch_scc1 no_tables")
    srd(a, sTMP, sB1P, sB1P + 1, 512)
    a(f"v_bfe_u32 v{vT}, v{vTID}, 7, 1")
    a(f"v_bfe_u32 v{vT + 1}, v{vTID}, 3, 4")
    a(f"v_and_b32 v{vT + 2}, 7, v{vTID}")
    a(f"v_lshl_add_u32 v{vT + 3}, v{vT}, 7, v{vT + 1}")
    a(f"v_lshl_add_u32 v{vT + 3}, v{vT + 2}, 4, v{vT + 3}")
    a(f"v_lshlrev_b32 v{vT + 3}, 1, v{vT + 3}")
    a(f"buffer_load_ushort v{vT + 4}, v{vT + 3}, {sr(sTMP, 4)}, 0 offen")
    srd(a, sTMP, sW1P, sW1P + 1, 257 * 512)
    a(f"s_mov_b32 s{sX0}, {256 * 512}")
    a(f"buffer_load_ushort v{vT + 5}, v{vT + 3}, {sr(sTMP, 4)}, s{sX0} offen")
    a(f"v_lshlrev_b32 v{vT}, 9, v{vT}")
    a(f"v_lshl_add_u32 v{vT}, v{vT + 1}, 5, v{vT}")
    a(f"v_and_b32 v{vT + 1}, 1, v{vT + 2}")
    a(f"v_lshl_add_u32 v{vT}, v{vT + 1}, 4, v{vT}")
    a(f"v_lshrrev_b32 v{vT + 2}, 1, v{vT + 2}")
    a(f"v_lshl_add_u32 v{vT}, v{vT + 2}, 2, v{vT}")
    a(f"v_cmp_eq_u32 vcc, 1, v{vT + 1}")
    a(f"v_mov_b32 v{vT + 2}, {f32(LOG2E)}")
    a(f"v_mov_b32 v{vT + 3}, {f32(LOG2E * 2.0 ** -LUT_SHIFT if opt.lut else LOG2E)}")
    a(f"v_cndmask_b32 v{vT + 2}, v{vT + 2}, v{vT + 3}, vcc")
    a(f"v_and_b32 v{vT + 1}, 127, v{vTID}")
    a(f"v_lshlrev_b32 v{vT + 1}, 2, v{vT + 1}")
    a(f"v_mov_b32 v{vT + 3}, 0")
    a(f"v_add_u32 v{vT + 1}, {DEGT}, v{vT + 1}")
    a(f"ds_write_b32 v{vT + 1}, v{vT + 3}")
    a(f"v_add_u32 v{vT}, {CT}, v{vT}")
    a("s_waitcnt vmcnt(0)")
    a(f"v_lshlrev_b32 v{vT + 4}, 16, v{vT + 4}")
    a(f"v_lshlrev_b32 v{vT + 5}, 16, v{vT + 5}")
    a(f"v_mul_f32 v{vT + 4}, v{vT + 4}, v{vT + 2}")
    a(f"v_mul_f32 v{vT + 5}, v{vT + 5}, v{vT + 2}")
    a(f"ds_write_b32 v{vT}, v{vT + 5}")
    a(f"ds_write_b32 v{vT}, v{vT + 4} offset:{B1T - CT}")
    a.label("no_tables")
    a("s_waitcnt vmcnt(6)")
    a(f"v_cmp_gt_u32 vcc, {NCH * 4}, v{vTID}")
    a(f"v_lshrrev_b32 v{vREM}, 16, v{vCUR}")
    a(f"v_and_b32 v{vCUR}, 0xffff, v{vCUR}")
    a(f"v_cndmask_b32 v{vREM}, 0, v{vREM}, vcc")
    a.label("have_table")
    vTK, vD, vOF = U2, U2 + 1, U2 + 2
    AD, RK = 12, 18
    a(f"v_min_u32 v{vTK}, 24, v{vREM}")
    a(f"v_lshl_add_u32 v{vOF}, v{vCUR}, 3, v{vCHB}")
    a(f"v_sub_u32 v{vD}, v{vTK}, v{vS2} clamp")
    a(f"v_mov_b32 v{vT + 1}, 0x7ffffff0")
    for i in range(3):
        a(f"v_cmp_lt_u32 vcc, {8 * i}, v{vD}")
        a("s_nop 1")
        a(f"v_cndmask_b32 v{vT + 2 + i}, v{vT + 1}, v{vOF}, vcc")
        a(f"buffer_load_dwordx4 {vr(G + 4 * i, 4)}, v{vT + 2 + i}, {sr(sWS, 4)}, 0 offen offset:{64 * i}")
    nl = lut_dma(a, 0, LUT_EARLY, "a") if opt.lut else 0
    a(f"v_cmp_eq_u32 vcc, 0, v{vS2}")
    a(f"v_and_b32 v{vT + 1}, 15, v{vLANE}")
    a(f"v_lshrrev_b32 v{vT + 2}, 4, v{vLANE}")
    a(f"v_cndmask_b32 v{vT}, 0, v{vTK}, vcc")
    a(f"v_lshrrev_b32 v{vT + 3}, 2, v{vT + 1}")
    a(f"v_mul_u32_u24 v{vT + 3}, 1088, v{vT + 3}")
    a(f"v_and_b32 v{vT + 4}, 3, v{vT + 1}")
    a(f"v_lshl_add_u32 v{vT + 3}, v{vT + 4}, 8, v{vT + 3}")
    a(f"v_xor_b32 v{vT + 4}, v{vT + 4}, v{vT + 2}")
    a(f"v_lshl_add_u32 v{vT + 3}, v{vT + 4}, 4, v{vT + 3}")
    a(f"v_add_u32 v{vT + 3}, {XO}, v{vT + 3}")
    a(f"v_mul_u32_u24 v{vT + 4}, {SROW}, v{vT + 1}")
    a(f"v_lshl_add_u32 v{vT + 4}, v{vT + 2}, 3, v{vT + 4}")
    a(f"s_lshl_b32 s{sX0}, s{sW}, 5")
    a(f"s_add_u32 s{sX0}, s{sX0}, {SR}")
    a(f"v_add_u32 v{vT + 4}, s{sX0}, v{vT + 4}")
    a(f"v_and_b32 v{vT + 2}, 1, v{vT + 2}")
    a(f"v_cmp_eq_u32 vcc, 1, v{vT + 2}")
    a(f"v_mov_b32 v{vT + 6}, {f32(LOG2E)}")
    a(f"v_mov_b32 v{vT + 7}, {f32(LOG2E * 2.0 ** -LUT_SHIFT if opt.lut else LOG2E)}")
    a(f"v_cndmask_b32 v{vT + 6}, v{vT + 6}, v{vT + 7}, vcc")
    a(f"s_waitcnt vmcnt({3 + nl}) lgkmcnt(0)")
    a("s_barrier")
    stamp(a, opt, 1, True)
    st = Stream(a)
    st.emit(f"ds_add_rtn_u32 v{vT}, v{vRA}, v{vT}")
    st.pend[-1] = {vT}
    xf = [(t, s) for t in range(7) for s in range(4)]

    def xread(n):
        t, s = xf[n]
        st.emit(f"ds_read_b128 {vr(XB + 4 * (n % 4), 4)}, v{vT + 3} offset:{t * 4352 + s * 64}")

    def bstore(t):
        d = DB + 4 * (t & 1)
        out = [f"v_mul_f32 v{d + j}, v{vT + 6}, v{d + j}" for j in range(4)]
        out += [f"v_cvt_pk_bf16_f32 v{d}, v{d}, v{d + 1}", f"v_cvt_pk_bf16_f32 v{d + 1}, v{d + 2}, v{d + 3}"]
        if t == 6:
            out += [f"v_cmpx_gt_u32 vcc, 4, v{vT + 1}"]
        out += [f"ds_write_b64 v{vT + 4}, {vr(d, 2)} offset:{t * 16 * SROW}"]
        if t == 6:
            out += ["s_mov_b64 exec, -1"]
        return out

    for n in range(3):
        xread(n)
    for n, (t, s) in enumerate(xf):
        if n + 3 < len(xf):
            xread(n + 3)
        d = DB + 4 * (t & 1)
        st.emit(f"v_mfma_f32_16x16x32_bf16 {vr(d, 4)}, {vr(WB + 4 * s, 4)}, {vr(XB + 4 * (n % 4), 4)}, {vr(d, 4) if s else '0'}")
        if s == 3 and t > 0:
            for x in bstore(t - 1):
                st.emit(x)
    a(f"v_mov_b32 v{vT + 2}, s{sCAP}")
    a(f"v_mov_b32_dpp v{vT}, v{vT} quad_perm:[0,0,0,0] row_mask:0xf bank_mask:0xf")
    a(f"v_sub_u32 v{vT}, v{vT + 2}, v{vT} clamp")
    a(f"v_min_u32 v{vTK}, v{vTK}, v{vT}")
    a(f"v_sub_u32 v{vD}, v{vTK}, v{vS2} clamp")
    a(f"v_mov_b32 v{vT + 7}, 1")
    a(f"v_cmpx_lt_u32 vcc, v{vTK}, v{vREM}")
    a(f"ds_write_b32 v{vRA}, v{vT + 7} offset:4")
    a("s_mov_b64 exec, -1")
    for x in bstore(6):
        a(x)
    ONE = vT + 7
    a(f"v_mov_b32 v{vT + 2}, {DEG}")
    JTH = (0, 1, 8, 9, 16, 17)
    for j in range(6):
        if j % 2 == 0:
            a(f"s_waitcnt vmcnt({2 - j // 2 + nl})")
        if j == 4:
            a("s_cbranch_execz ranked")
        a(f"v_and_b32 v{AD + j}, 0x7f, v{G + 2 * j}")
        a(f"v_lshl_add_u32 v{AD + j}, v{AD + j}, 2, v{vT + 2}")
        a(f"v_cmpx_lt_u32 vcc, {JTH[j]}, v{vD}")
        a(f"ds_add_rtn_u32 v{RK + j}, v{AD + j}, v{ONE}")
    a.label("ranked")
    a("s_mov_b64 exec, -1")
    a("s_waitcnt lgkmcnt(0)")
    a("s_barrier")
    stamp(a, opt, 2, True)
    a(f"s_cmp_lg_u32 s{sW}, 0")
    a("s_cbranch_scc1 sorted")
    d0, d1, k0, k1, r0, r1, x0, x1 = range(Y1, Y1 + 8)
    l4, n1, h_, sp, e0, e1, e2, e3 = range(Y2, Y2 + 8)
    a(f"v_lshlrev_b32 v{l4}, 2, v{vLANE}")
    a(f"v_add_u32 v{x0}, {DEG}, v{l4}")
    a(f"ds_read_b32 v{d0}, v{x0}")
    a(f"ds_read_b32 v{d1}, v{x0} offset:256")
    a(f"v_cmp_gt_u32 s[20:21], {4 * NQ - 64}, v{vLANE}")
    a(f"v_add_u32 v{n1}, 64, v{vLANE}")
    a(f"v_mov_b32 v{vT + 3}, {DH}")
    a(f"v_mov_b32 v{vT + 4}, 16")
    a(f"ds_write_b32 v{vRA}, v{vT + 4} offset:12")
    a("s_waitcnt lgkmcnt(1)")
    for d, k in ((d0, k0), (d1, k1)):
        a(f"v_add_u32 v{k}, 1, v{d}")
        a(f"v_lshrrev_b32 v{k}, 1, v{k}")
        a(f"v_min_u32 v{k}, 63, v{k}")
        a(f"v_sub_u32 v{k}, 63, v{k}")
        a(f"v_lshlrev_b32 v{k}, 2, v{k}")
    a(f"v_add_u32 v{e0}, v{vT + 3}, v{k0}")
    a(f"v_add_u32 v{e1}, v{vT + 3}, v{k1}")
    a(f"ds_add_rtn_u32 v{r0}, v{e0}, v{ONE}")
    a("s_mov_b64 exec, s[20:21]")
    a(f"ds_add_rtn_u32 v{r1}, v{e1}, v{ONE}")
    a("s_mov_b64 exec, -1")
    a(f"ds_read_b32 v{h_}, v{x0} offset:{DH - DEG}")
    a("s_waitcnt lgkmcnt(0)")
    a(f"v_mov_b32 v{sp}, v{h_}")
    dpp_scan(a, sp)
    a(f"v_sub_u32 v{sp}, v{sp}, v{h_}")
    a(f"ds_bpermute_b32 v{k0}, v{k0}, v{sp}")
    a(f"ds_bpermute_b32 v{k1}, v{k1}, v{sp}")
    a(f"v_mov_b32 v{vT + 3}, {SN}")
    a("s_waitcnt lgkmcnt(0)")
    a(f"v_add_u32 v{r0}, v{r0}, v{k0}")
    a(f"v_add_u32 v{r1}, v{r1}, v{k1}")
    a(f"v_lshl_add_u32 v{e0}, v{r0}, 2, v{vT + 3}")
    a(f"v_lshl_add_u32 v{e1}, v{r1}, 2, v{vT + 3}")
    a(f"ds_write_b32 v{e0}, v{vLANE}")
    a(f"ds_write_b32 v{e0}, v{d0} offset:{SD - SN}")
    a("s_mov_b64 exec, s[20:21]")
    a(f"ds_write_b32 v{e1}, v{n1}")
    a(f"ds_write_b32 v{e1}, v{d1} offset:{SD - SN}")
    a("s_mov_b64 exec, -1")
    a(f"v_lshlrev_b32 v{h_}, 4, v{vLANE}")
    a(f"v_add_u32 v{h_}, {SD}, v{h_}")
    a(f"ds_read_b128 {vr(e0, 4)}, v{h_}")
    a(f"v_cmp_gt_u32 vcc, {NQ}, v{vLANE}")
    a("s_waitcnt lgkmcnt(0)")
    a(f"v_max3_u32 v{h_}, v{e0}, v{e1}, v{e2}")
    a(f"v_max_u32 v{h_}, v{h_}, v{e3}")
    a(f"v_add_u32 v{h_}, 1, v{h_}")
    a(f"v_lshrrev_b32 v{h_}, 1, v{h_}")
    a(f"v_max_u32 v{h_}, 1, v{h_}")
    a(f"v_cndmask_b32 v{h_}, 0, v{h_}, vcc")
    a(f"v_mov_b32 v{sp}, v{h_}")
    dpp_scan(a, sp)
    a("s_nop 0")
    a(f"v_readlane_b32 s{sX0}, v{sp}, 63")
    a(f"v_sub_u32 v{sp}, v{sp}, v{h_}")
    a(f"v_lshlrev_b32 v{sp}, 6, v{sp}")
    a(f"v_and_b32 v{k0}, -4, v{r0}")
    a(f"v_and_b32 v{k1}, -4, v{r1}")
    a(f"ds_bpermute_b32 v{k0}, v{k0}, v{sp}")
    a(f"ds_bpermute_b32 v{k1}, v{k1}, v{sp}")
    a(f"v_lshl_or_b32 v{h_}, v{h_}, 16, v{sp}")
    a(f"v_cmpx_gt_u32 vcc, 32, v{vLANE}")
    a(f"ds_write_b32 v{x0}, v{h_} offset:{TT - DEG}")
    a("s_mov_b64 exec, -1")
    a(f"s_cmp_gt_u32 s{sX0}, {LCAP // 8}")
    a("s_cbranch_scc0 fits")
    a(f"ds_write_b32 v{vRA}, v{ONE} offset:8")
    a("s_branch sorted")
    a.label("fits")
    a(f"v_and_b32 v{r0}, 3, v{r0}")
    a(f"v_and_b32 v{r1}, 3, v{r1}")
    a(f"ds_add_u32 v{x0}, v{d0} offset:{DEGT - DEG}")
    a("s_waitcnt lgkmcnt(1)")
    a(f"v_lshl_add_u32 v{k0}, v{r0}, 3, v{k0}")
    a(f"v_lshl_add_u32 v{k1}, v{r1}, 3, v{k1}")
    a(f"ds_write_b32 v{x0}, v{k0} offset:{NBT - DEG}")
    a("s_mov_b64 exec, s[20:21]")
    a(f"ds_write_b32 v{x0}, v{k1} offset:{NBT - DEG + 256}")
    a(f"ds_add_u32 v{x0}, v{d1} offset:{DEGT - DEG + 256}")
    a("s_mov_b64 exec, -1")
    a.label("sorted")
    if opt.lut:
        lut_dma(a, LUT_EARLY, LUT_N * 2 // 1024 - LUT_EARLY, "b")
    for j in range(6):
        a(f"v_and_b32 v{G + 2 * j}, 0xfffffe00, v{G + 2 * j}")
    a("s_waitcnt lgkmcnt(0)")
    a("s_barrier")
    stamp(a, opt, 3, True)
    a(f"ds_read_b64 {vr(vT + 2, 2)}, v{vRA} offset:4")
    a(f"v_lshlrev_b32 v{vT}, 2, v{vLANE}")
    a(f"v_add_u32 v{vT}, {TT}, v{vT}")
    a(f"ds_read_b32 v{vTT}, v{vT}")
    a(f"v_cmpx_lt_u32 vcc, 0, v{vD}")
    for j in range(4):
        if j == 2:
            a(f"v_cmpx_lt_u32 vcc, 8, v{vD}")
        a(f"ds_read_b32 v{AD + j}, v{AD + j} offset:{NBT - DEG}")
    a("s_mov_b64 exec, -1")
    a("s_waitcnt lgkmcnt(0)")
    a(f"v_readfirstlane_b32 s{sX0}, v{vT + 3}")
    a(f"v_readfirstlane_b32 s{sMORE}, v{vT + 2}")
    a(f"s_cmp_eq_u32 s{sX0}, 0")
    a("s_cbranch_scc1 place")
    a(f"s_mov_b32 s{sCAP}, {CAP2}")
    a("s_waitcnt vmcnt(0)")
    a("s_barrier")
    a("s_branch round_top")
    a.label("place")
    for j in range(6):
        a(f"v_cmpx_lt_u32 vcc, {JTH[j]}, v{vD}")
        if j == 4:
            a("s_cbranch_execz placed")
            a(f"ds_read_b32 v{AD + 4}, v{AD + 4} offset:{NBT - DEG}")
            a(f"ds_read_b32 v{AD + 5}, v{AD + 5} offset:{NBT - DEG}")
            a("s_waitcnt lgkmcnt(0)")
        a(f"v_lshl_add_u32 v{AD + j}, v{RK + j}, 5, v{AD + j}")
        a(f"ds_write_b64 v{AD + j}, {vr(G + 2 * j, 2)} offset:{LIST}")
    a.label("placed")
    a("s_mov_b64 exec, -1")
    a(f"v_add_u32 v{vCUR}, v{vCUR}, v{vTK}")
    a(f"v_sub_u32 v{vREM}, v{vREM}, v{vTK}")
    a(f"s_mov_b32 s{sPI}, s{sW}")
    a(f"s_mov_b32 s{sCI}, s{sW}")
    a(f"s_mov_b64 {sr(sFIFO, 2)}, 0")
    a(f"s_mov_b32 s{sFCNT}, 0")
    hop_p(a, "init", claim=False)
    if opt.lut:
        for i in range(8):
            a(f"v_mov_b32 v{regs(opt)['HL'] + i}, 0")
    a("s_waitcnt vmcnt(0) lgkmcnt(0)")
    a("s_barrier")
    stamp(a, opt, 4, True)
    for k in range(NR):
        for x in rec_read(k):
            a(x)
        a(f"s_mov_b32 s{sPG}, s{sPR}")
        a(f"s_add_u32 s{sPOFF}, s{sPOFF}, s{sPINC}")
        a(f"s_sub_u32 s{sPREM}, s{sPREM}, 1")
        a(f"s_cmp_lg_u32 s{sPREM}, 0")
        a(f"s_cbranch_scc1 prime_{k}")
        hop_p(a, f"prime{k}", dyn=opt.dyn)
        a.label(f"prime_{k}")
        if k < NR - 1:
            a("s_waitcnt lgkmcnt(0)")
            for x in gathers(k):
                a(x)
    switch_in(a, opt, "init")
    dummy = Asm()
    st = Stream(dummy)
    for ph in range(NR):
        iteration(dummy, st, opt, ph)
    st.a = a
    start = [set(p) for p in st.pend]
    a.label("loop_top")
    for ph in range(NR):
        iteration(a, st, opt, ph)
    assert [set(p) for p in st.pend] == start
    a("s_branch loop_top")
    for ph in range(NR):
        a.label(f"hookP_{ph}")
        hop_p(a, f"h{ph}", dyn=opt.dyn)
        a(f"s_branch backP_{ph}")
        a.label(f"hookC_{ph}")
        flush(a, f"h{ph}")
        a(f"s_and_b32 s{sCI}, s{sFIFO}, 0xff")
        a(f"s_lshr_b64 {sr(sFIFO, 2)}, {sr(sFIFO, 2)}, 8")
        a(f"s_sub_u32 s{sFCNT}, s{sFCNT}, 8")
        a(f"s_cmp_ge_u32 s{sCI}, {NTASK}")
        a("s_cbranch_scc1 loop_exit")
        switch_in(a, opt, f"h{ph}")
        a(f"s_branch backC_{ph}")
    a.label("loop_exit")
    stamp(a, opt, 5)
    if opt.prio:
        a("s_setprio 0")
    a(f"s_cmp_eq_u32 s{sMORE}, 0")
    a("s_cbranch_scc1 last_round")
    a(f"s_add_u32 s{sROUND}, s{sROUND}, 1")
    a("s_waitcnt vmcnt(0) lgkmcnt(0)")
    a("s_barrier")
    a("s_branch round_top")
    a.label("last_round")
    WF, OA, SF, BB = 0, 64, 80, 96
    a(f"s_and_b32 s{sX0}, s{sW}, 3")
    a(f"s_lshr_b32 s{sX1}, s{sW}, 2")
    a(f"s_lshl_b32 s{sX2}, s{sX0}, 14")
    a(f"s_add_u32 s{sX2}, s{sX2}, {W2F:#x}")
    a(f"v_lshlrev_b32 v{vT}, 4, v{vLANE}")
    a("s_waitcnt lgkmcnt(0)")
    for f in range(16):
        if f % 4 == 0 and f:
            a(f"s_add_u32 s{sX2}, s{sX2}, 4096")
        a(f"buffer_load_dwordx4 {vr(WF + 4 * f, 4)}, v{vT}, {sr(sWS, 4)}, s{sX2} offen offset:{(f % 4) * 1024}")
    srd(a, sTMP, sB2P, sB2P + 1, 256)
    a(f"v_lshrrev_b32 v{vT + 1}, 5, v{vLANE}")
    a(f"s_lshl_b32 s{sX2}, s{sX0}, 6")
    a(f"v_lshl_add_u32 v{vT + 2}, v{vT + 1}, 5, s{sX2}")
    a(f"buffer_load_dwordx4 {vr(BB, 4)}, v{vT + 2}, {sr(sTMP, 4)}, 0 offen")
    a(f"buffer_load_dwordx4 {vr(BB + 4, 4)}, v{vT + 2}, {sr(sTMP, 4)}, 0 offen offset:16")
    a(f"v_and_b32 v{vT + 3}, 31, v{vLANE}")
    a(f"s_lshl_b32 s{sX1}, s{sX1}, 5")
    a(f"v_add_u32 v{vT + 3}, s{sX1}, v{vT + 3}")
    a(f"v_mul_u32_u24 v{vT + 4}, {SROW}, v{vT + 3}")
    a(f"v_lshl_add_u32 v{vT + 4}, v{vT + 1}, 4, v{vT + 4}")
    a(f"v_lshlrev_b32 v{vT + 5}, 2, v{vT + 3}")
    a(f"v_add_u32 v{vT + 5}, {DEGT}, v{vT + 5}")
    a(f"s_mul_i32 s{sX1}, s{sQ}, {BN * 256}")
    a(f"v_lshl_add_u32 v{vT + 2}, v{vT + 3}, 8, v{vT + 2}")
    a(f"ds_read_b32 v{vT + 6}, v{vT + 5}")
    a("s_waitcnt vmcnt(0) lgkmcnt(0)")
    a(f"v_cvt_f32_u32 v{vT + 6}, v{vT + 6}")
    for k in range(8):
        a(f"v_lshlrev_b32 v{OA + 2 * k}, 16, v{BB + k}")
        a(f"v_and_b32 v{OA + 2 * k + 1}, 0xffff0000, v{BB + k}")
    for k in range(16):
        a(f"v_mul_f32 v{OA + k}, v{vT + 6}, v{OA + k}")
    a("s_barrier")
    stamp(a, opt, 6, True)
    st = Stream(a)

    def sread(f):
        st.emit(f"ds_read_b128 {vr(SF + 4 * (f % 6), 4)}, v{vT + 4} offset:{SR + 32 * f}")

    for f in range(6):
        sread(f)
    for f in range(16):
        st.emit(f"v_mfma_f32_32x32x16_bf16 {vr(OA, 16)}, {vr(WF + 4 * f, 4)}, {vr(SF + 4 * (f % 6), 4)}, {vr(OA, 16)}")
        if f + 6 < 16:
            sread(f + 6)
    a(f"v_cmp_gt_u32 vcc, {BN}, v{vT + 3}")
    a("s_nop 7")
    a("s_nop 2")
    for k in range(8):
        a(f"v_cvt_pk_bf16_f32 v{WF + k}, v{OA + 2 * k}, v{OA + 2 * k + 1}")
    a("s_and_b64 exec, exec, vcc")
    a("s_cbranch_execz main_end")
    a(f"buffer_store_dwordx4 {vr(WF, 4)}, v{vT + 2}, {sr(sOUT, 4)}, s{sX1} offen{opt.outmod}")
    a(f"buffer_store_dwordx4 {vr(WF + 4, 4)}, v{vT + 2}, {sr(sOUT, 4)}, s{sX1} offen offset:16{opt.outmod}")
    a.label("main_end")
    if opt.stamps:
        a("s_mov_b64 exec, -1")
    stamp_out(a, opt)
    a.label("main_done")
    a("s_endpgm")
    return dict(vgpr=128, sgpr=96 if opt.stamps else 64, lds=lds, grid=NB, block=1024)


def build(opt):
    b, m = Asm(), Asm()
    ib = gen_prep(b, opt)
    im = gen_main(m, opt)
    kn = NAME + "_kernel"
    out = HEADER
    out += f"; @launch kernel=prep_kernel grid=({ib['grid']},1,1) block=({ib['block']},1,1) lds={ib['lds']}\n"
    out += f"; @launch kernel={kn} grid=({im['grid']},1,1) block=({im['block']},1,1) lds={im['lds']}\n"
    out += '.amdgcn_target "amdgcn-amd-amdhsa--gfx950"\n.text\n'
    out += ".globl prep_kernel\n.p2align 8\n.type prep_kernel,@function\n" + b.text()
    out += f".globl {kn}\n.p2align 8\n.type {kn},@function\n" + m.text()
    out += '.section .rodata,"a"\n.p2align 6\n' + kd("prep_kernel", ib) + ".p2align 6\n" + kd(kn, im)
    return out, ib, im


if __name__ == "__main__":
    ap = argparse.ArgumentParser()
    ap.add_argument("-o", default=f"cdna_kernels/{NAME}.s")
    ap.add_argument("--stamps", action="store_true")
    ap.add_argument("--pstamps", action="store_true")
    ap.add_argument("--nostore", action="store_true")
    ap.add_argument("--stmod", default="")
    ap.add_argument("--lut", action="store_true")
    ap.add_argument("--pair", action="store_true")
    ap.add_argument("--ring", type=int, default=3)
    ap.add_argument("--prio", type=int, default=1)
    ap.add_argument("--dyn", type=int, default=1)
    ap.add_argument("--exp", default="")
    ap.add_argument("--ntin", type=int, default=0)
    ap.add_argument("--outmod", default="")
    ap.add_argument("--wsbase", type=lambda x: int(x, 0), default=0)
    opt = ap.parse_args()
    EXP.update(x for x in opt.exp.split(",") if x)
    txt, ib, im = build(opt)
    open(opt.o, "w").write(txt)
    import asmcheck
    r = asmcheck.check(txt)
    for x in r:
        print(x)
    print(len(r), "findings;", len(txt.splitlines()), "lines;", ib, im)
```

```python
import re
import sys

TRANS = ("v_exp_f32", "v_rcp_f32", "v_log_f32", "v_rsq_f32", "v_sqrt_f32", "v_rcp_iflag_f32")


def regs_of(tok):
    tok = tok.strip()
    tok = tok.lstrip("-")
    m = re.fullmatch(r"abs\((.*)\)", tok)
    if m:
        tok = m.group(1)
    tok = tok.strip("|")
    m = re.fullmatch(r"([vsa])(\d+)", tok)
    if m:
        return {(m.group(1), int(m.group(2)))}
    m = re.fullmatch(r"([vsa])\[(\d+):(\d+)\]", tok)
    if m:
        return {(m.group(1), i) for i in range(int(m.group(2)), int(m.group(3)) + 1)}
    if tok == "vcc":
        return {("s", "vcc_lo"), ("s", "vcc_hi")}
    if tok in ("vcc_lo", "vcc_hi"):
        return {("s", tok)}
    if tok == "exec":
        return {("s", "exec_lo"), ("s", "exec_hi")}
    if tok in ("exec_lo", "exec_hi"):
        return {("s", tok)}
    if tok == "m0":
        return {("s", "m0")}
    return set()


VCC = {("s", "vcc_lo"), ("s", "vcc_hi")}
EXEC = {("s", "exec_lo"), ("s", "exec_hi")}


class I:
    def __init__(self, text, lineno):
        self.text = text
        self.lineno = lineno
        parts = text.split(None, 1)
        self.op = parts[0]
        rest = parts[1] if len(parts) > 1 else ""
        ops, depth, cur = [], 0, ""
        for ch in rest:
            if ch == "[":
                depth += 1
            if ch == "]":
                depth -= 1
            if ch == "," and depth == 0:
                ops.append(cur.strip())
                cur = ""
            else:
                cur += ch
        if cur.strip():
            ops.append(cur.strip())
        self.mods = ""
        if ops:
            last = ops[-1].split(None, 1)
            if len(last) > 1 and not self.op.startswith("s_waitcnt"):
                ops[-1] = last[0]
                self.mods = last[1]
        self.ops = ops
        self.classify()

    def classify(self):
        op, ops = self.op, self.ops
        base = re.sub(r"_(e32|e64|sdwa|dpp)$", "", op)
        self.base = base
        self.is_mfma = base.startswith("v_mfma") or base.startswith("v_smfmac")
        self.is_valu = base.startswith("v_") and not self.is_mfma
        self.is_trans = base in TRANS
        self.is_ds = base.startswith("ds_")
        self.is_vmem = base.startswith("buffer_") or base.startswith("global_")
        self.is_smem = base.startswith("s_load") or base.startswith("s_memtime") or base.startswith("s_memrealtime")
        self.is_salu = base.startswith("s_") and not self.is_smem
        self.is_dpp = op.endswith("_dpp") or "row_" in self.mods or "quad_perm" in self.mods
        self.lds_dma = self.is_vmem and re.search(r"\blds\b", self.mods) is not None
        self.defs, self.uses = set(), set()
        self.srcC = set()
        self.srcAB = set()
        self.async_defs = set()
        R = regs_of
        if self.is_mfma:
            self.defs = R(ops[0])
            self.srcAB = R(ops[1]) | R(ops[2])
            if base.startswith("v_smfmac"):
                self.srcC = R(ops[0])
                self.srcAB |= R(ops[3])
            else:
                self.srcC = R(ops[3])
            self.uses = self.srcAB | self.srcC
            self.passes = 8 if "32x32" in base else 4
        elif self.is_valu:
            if base.startswith("v_cmpx"):
                self.defs = R(ops[0]) | EXEC
                for o in ops[1:]:
                    self.uses |= R(o)
            elif base.startswith("v_cmp"):
                self.defs = R(ops[0])
                for o in ops[1:]:
                    self.uses |= R(o)
            elif base in ("v_add_co_u32", "v_sub_co_u32", "v_addc_co_u32", "v_subb_co_u32"):
                self.defs = R(ops[0]) | R(ops[1])
                for o in ops[2:]:
                    self.uses |= R(o)
            elif base.startswith("v_permlane"):
                self.defs = R(ops[0]) | R(ops[1])
                self.uses = set(self.defs)
            elif base == "v_nop":
                pass
            else:
                self.defs = R(ops[0])
                for o in ops[1:]:
                    self.uses |= R(o)
                if base in ("v_fmac_f32", "v_writelane_b32", "v_dot2c_f32_bf16") or self.is_dpp:
                    self.uses |= R(ops[0])
        elif self.is_ds:
            if base.startswith("ds_read") or "_rtn_" in base or base.startswith("ds_bpermute") or base.startswith("ds_swizzle"):
                self.async_defs = R(ops[0])
                for o in ops[1:]:
                    self.uses |= R(o)
                if "d16" in base:
                    self.uses_partial = True
            else:
                for o in ops:
                    self.uses |= R(o)
        elif self.is_vmem:
            if self.lds_dma:
                for o in ops:
                    self.uses |= R(o)
                self.uses |= {("s", "m0")}
            elif "load" in base:
                self.async_defs = R(ops[0])
                for o in ops[1:]:
                    self.uses |= R(o)
            elif "atomic" in base:
                if "sc0" in self.mods:
                    self.async_defs = R(ops[0])
                for o in ops:
                    self.uses |= R(o)
            else:
                for o in ops:
                    self.uses |= R(o)
        elif self.is_smem:
            self.async_defs = R(ops[0])
            for o in ops[1:]:
                self.uses |= R(o)
        elif self.is_salu:
            if base.startswith("s_cmp") or base.startswith("s_cbranch") or base in (
                "s_branch", "s_barrier", "s_endpgm", "s_nop", "s_waitcnt", "s_setprio", "s_sleep", "s_bitcmp1_b32", "s_bitcmp0_b32"):
                for o in ops:
                    self.uses |= R(o)
                if base in ("s_cbranch_vccz", "s_cbranch_vccnz"):
                    self.uses |= VCC
                if base in ("s_cbranch_execz", "s_cbranch_execnz"):
                    self.uses |= EXEC
            else:
                self.defs = R(ops[0])
                for o in ops[1:]:
                    self.uses |= R(o)
                if "saveexec" in base:
                    self.defs |= EXEC
                    self.uses |= EXEC
                if base in ("s_addk_i32", "s_mulk_i32"):
                    self.uses |= R(ops[0])
        self.states = 1
        if base == "s_nop":
            self.states = int(ops[0], 0) + 1
        self.wait = {}
        if base == "s_waitcnt":
            for m in re.finditer(r"(vmcnt|lgkmcnt|expcnt)\((\d+)\)", self.text):
                self.wait[m.group(1)] = int(m.group(2))
        self.store_data = set()
        if self.is_vmem and "store" in base and (base.endswith("x4") or base.endswith("x3")):
            self.store_data = R(ops[0]) if base.startswith("buffer") else R(ops[1])


def parse(text):
    ins, labels = [], {}
    for n, line in enumerate(text.splitlines(), 1):
        line = line.split(";")[0].split("//")[0].strip()
        if not line:
            continue
        if line.startswith("."):
            if not line.endswith(":"):
                if line.startswith(".section"):
                    break
                continue
        m = re.fullmatch(r"([\w.$]+):", line)
        if m:
            labels[m.group(1)] = len(ins)
            continue
        ins.append(I(line, n))
    return ins, labels


def resolve(ins, k, fix):
    i = ins[k]
    if i.base not in ("s_cbranch_scc0", "s_cbranch_scc1") or k == 0:
        return None
    c = ins[k - 1]
    m = re.fullmatch(r"s_cmp_(lt|ge|eq|lg|gt|le)_u32", c.base)
    if not m:
        return None
    try:
        imm = int(c.ops[1], 0)
    except ValueError:
        return None
    v = fix.get(c.ops[0])
    if v is None and k >= 2 and ins[k - 2].base == "s_sub_u32" and ins[k - 2].ops[0] == c.ops[0] and ins[k - 2].ops[1] in fix:
        v = (fix[ins[k - 2].ops[1]] - int(ins[k - 2].ops[2], 0)) & 0xffffffff
    if v is None:
        return None
    scc = {"lt": v < imm, "ge": v >= imm, "eq": v == imm, "lg": v != imm, "gt": v > imm, "le": v <= imm}[m.group(1)]
    return scc == (i.base == "s_cbranch_scc1")


def cfg(ins, labels, fix={}):
    preds = [[] for _ in ins]
    for k, i in enumerate(ins):
        succ = []
        if i.base == "s_endpgm":
            pass
        elif i.base == "s_branch":
            succ = [labels[i.ops[0]]]
        elif i.base.startswith("s_cbranch"):
            r = resolve(ins, k, fix)
            succ = [labels[i.ops[0]], k + 1] if r is None else [labels[i.ops[0]]] if r else [k + 1]
        else:
            succ = [k + 1]
        for s in succ:
            if s < len(ins):
                preds[s].append(k)
    return preds


def vregs(s):
    return {r for r in s if r[0] in "va"}


def sregs(s):
    return {r for r in s if r[0] == "s"}


def need(p, c):
    n = 0
    why = ""

    def up(v, w):
        nonlocal n, why
        if v > n:
            n, why = v, w

    cread = c.uses
    cwrite = c.defs | c.async_defs
    if p.is_mfma:
        d = p.defs
        big = {8: 12, 4: 8}[p.passes]
        if c.is_mfma:
            if c.srcAB & d:
                up(big, "mfma D -> mfma A/B")
            if c.srcC & d and (c.srcC != d or c.passes != p.passes):
                up(big - 2, "mfma D -> mfma C partial")
            if c.defs & d and not (c.srcC & d) :
                up(big - 2, "mfma D -> mfma D (WAW, new chain)")
        else:
            if (cread | cwrite) & d and (c.is_valu or c.is_vmem or c.is_ds):
                up(big, "mfma D -> valu/mem")
        if c.is_valu and c.defs & p.srcC:
            up({8: 7, 4: 3}[p.passes], "mfma srcC WAR")
    if p.is_valu:
        vd = vregs(p.defs)
        sd = sregs(p.defs) - EXEC
        if c.is_mfma and c.uses & vd:
            up(2, "valu -> mfma operand")
        if p.is_trans and c.is_valu and not c.is_trans and c.uses & vd:
            up(1, "trans -> use")
        if p.is_trans and (c.is_ds or c.is_vmem) and c.uses & vd:
            up(1, "trans -> mem use")
        if c.base in ("v_readlane_b32", "v_readfirstlane_b32") and c.uses & vd:
            up(1, "valu -> readlane")
        if c.is_valu and c.is_dpp and c.uses & vd:
            up(2, "valu -> dpp")
        if c.base.startswith("v_permlane") and c.uses & vd:
            up(2, "valu -> permlane")
        if sd:
            if c.is_valu and c.uses & sd:
                up(2, "valu sgpr -> valu const/mask")
            if c.base in ("v_readlane_b32", "v_writelane_b32") and c.uses & sd:
                up(4, "valu sgpr -> lane select")
            if c.is_vmem and c.uses & sd:
                up(5, "valu sgpr -> vmem")
        if p.defs & EXEC:
            if c.base in ("v_readlane_b32", "v_readfirstlane_b32", "v_writelane_b32") or c.base.startswith("v_permlane"):
                up(4, "cmpx -> lane op")
            if c.is_valu and c.is_dpp:
                up(5, "cmpx -> dpp")
            if c.is_mfma:
                up(4, "cmpx -> mfma")
            if c.is_valu and c.uses & EXEC:
                up(2, "cmpx -> exec const")
        if "sdwa" in p.op and "dst_sel:DWORD" not in p.mods and c.is_valu and (c.uses | c.defs) & vd:
            up(1, "sdwa dst")
    if p.is_salu and ("s", "m0") in p.defs and c.lds_dma:
        up(1, "m0 -> lds dma")
    if p.store_data and cwrite & p.store_data:
        up(2 if c.is_valu or c.is_mfma else 1, "wide store data WAR")
    return n, why


def check_hazards(ins, preds, out):
    bad = 0
    MAXD = 12
    for k, c in enumerate(ins):
        seen = {}
        stack = [(p, 0) for p in preds[k]]
        while stack:
            j, dist = stack.pop()
            if j in seen and seen[j] <= dist:
                continue
            seen[j] = dist
            p = ins[j]
            n, why = need(p, c)
            if n > dist:
                out.append(f"HAZARD {why}: need {n} have {dist}: L{p.lineno} '{p.text}' -> L{c.lineno} '{c.text}'")
                bad += 1
            d2 = dist + p.states
            if d2 < MAXD:
                for q in preds[j]:
                    stack.append((q, d2))
    return bad


def cls_of(i):
    if i.is_vmem:
        return "vmcnt"
    if i.is_ds or i.is_smem:
        return "lgkmcnt"
    return None


def check_waits(ins, preds, out):
    bad = 0
    INF = 10 ** 6
    for k, c in enumerate(ins):
        touched = c.uses | c.defs | c.async_defs
        touched = {r for r in touched if not (r[0] == "s" and isinstance(r[1], str))}
        if not touched:
            continue
        for cl in ("vmcnt", "lgkmcnt"):
            seen = set()
            stack = [(p, INF, frozenset(touched)) for p in preds[k]]
            while stack:
                j, bud, live = stack.pop()
                key = (j, bud, live)
                if key in seen:
                    continue
                seen.add(key)
                p = ins[j]
                if cl in p.wait:
                    bud = min(bud, p.wait[cl])
                if bud == 0:
                    continue
                if cls_of(p) == cl:
                    hit = p.async_defs & live
                    if hit:
                        only_waw = cls_of(c) == cl and not (hit & c.uses) and not p.is_smem and not c.is_smem
                        if not only_waw:
                            out.append(f"UNWAITED {cl}: L{p.lineno} '{p.text}' -> L{c.lineno} '{c.text}'")
                            bad += 1
                        live = live - hit
                    if p.is_smem:
                        pass
                    elif bud < INF:
                        bud -= 1
                        if bud == 0:
                            continue
                live = live - p.defs
                if not live:
                    continue
                for q in preds[j]:
                    stack.append((q, bud, live))
    return bad


def reach(ins, labels, preds, entries):
    succ = [[] for _ in ins]
    for k, ps in enumerate(preds):
        for p in ps:
            succ[p].append(k)
    seen = set()
    stack = [labels[e] for e in entries]
    while stack:
        k = stack.pop()
        if k in seen:
            continue
        seen.add(k)
        stack += succ[k]
    return [[p for p in ps if p in seen] if k in seen else [] for k, ps in enumerate(preds)]


def check(text, fixes=({},)):
    ins, labels = parse(text)
    out = []
    entries = [l for l in labels if l.endswith("_kernel")]
    check_hazards(ins, cfg(ins, labels), out)
    for fix in fixes:
        preds = cfg(ins, labels, fix)
        if entries:
            preds = reach(ins, labels, preds, entries)
        check_waits(ins, preds, out)
    seen = set()
    res = []
    for o in out:
        if o not in seen:
            seen.add(o)
            res.append(o)
    return res


if __name__ == "__main__":
    r = check(open(sys.argv[1]).read())
    for x in r:
        print(x)
    print(len(r), "findings")
```

```python
import argparse
import struct
import sys

sys.path.insert(0, "gen")
from gen import Asm, Stream, f32, srd, vr, sr, HEADER, kd, NAME
import stream2 as S2

N, E = 25000, 400000
NCH, CH = 250, 1600
BN, NB = 98, 256
BMAGIC, BSHIFT = 42800, 22
REC, TAB = 0, 0x320000
W2F, GO = 0x3A0000, 0x3C0000
AOFF, SAVE = 0x400000, 0x2000000
STAMP = 0x4000000
WS_BYTES = 0x5000000
LOG2E = 1.4426950408889634
LN2 = 0.6931471805599453
LUT_SHIFT = 52
LUT_N = 85 * 512
PADVAL_EXP = 24


def bf16_bits(x):
    return struct.unpack("<I", struct.pack("<f", x))[0] >> 16


def dpp_scan(a, v):
    for sh in (1, 2, 4, 8):
        a("s_nop 1")
        a(f"v_add_u32_dpp v{v}, v{v}, v{v} row_shr:{sh} row_mask:0xf bank_mask:0xf")
    a("s_nop 1")
    a(f"v_add_u32_dpp v{v}, v{v}, v{v} row_bcast:15 row_mask:0xa bank_mask:0xf")
    a("s_nop 1")
    a(f"v_add_u32_dpp v{v}, v{v}, v{v} row_bcast:31 row_mask:0xc bank_mask:0xf")


LCAP = 2272
CAP1, CAP2 = 2048, 512
NQ, NTASK = 25, 50
SROW = 528
LIST = 128
PADA = LIST + LCAP * 8
CT = PADA + 192
B1T = CT + 1024
DEG = B1T + 1024
DH = DEG + 512
RS = DH + 256
DEGT = RS + 32
NBT = DEGT + 512
SN = NBT + 512
SD = SN + 512
TT = SD + 512
SWC = TT + 128
GOI = SWC + 16
SR = GOI + 64
LEND = SR + 100 * SROW
LUTO = 163840 - LUT_N * 2
assert LUTO >= LEND
HIST, STG = 0, 1024
WBI = SR + 16
WAI = WBI + 64 * 1088
assert WAI + 64 * 1088 <= 163840 and SR % 16 == 0
PADREC = N * 512

G, R, B, C, ACC = 0, 32, 48, 56, 64
Y1, Y2, U1, U2 = 72, 80, 88, 96
vLP, vLG, vLAD, vSA, vTT, vNC, vCUR, vREM = range(104, 112)
vTID, vLANE, vCUR2, vCADR, vG4, vREM2, vRA = range(112, 119)
vT = 120
sA, sX, sWS, sOUT = 4, 8, 12, 16
sTMP = 20
sQ, sW, sROUND, sCAP, sMORE, sPOFF, sPREM, sPINC, sSEL1, sPR, sPG, sCREM, sCI, sCPASS = range(24, 38)
sSEL, sLUT = 38, 39
sK, sONE, sSCL, sSCH = 40, 42, 44, 46
sX0, sX1, sX2, sX3 = 48, 49, 50, 51
sW1P, sB1P, sB2P = 52, 54, 56
sFIFO, sFCNT, sPI = 60, 62, 63
sID, sBAR, sDBG = 2, 3, 72
sW2P, sSPIN, sOK = 66, 70, 71
sNP = 29
sJOB, sJOBS = 22, 64
sAG = 76
sST = 80


def regs(opt):
    if opt.lut:
        return dict(B=B, C=C, ACC=ACC, Y1=Y1, Y2=Y2, U1=U1, U2=U1 + 4, HL=U2, sSEL=sSEL, sK=sK, sONE=sONE, sLUT=sLUT)
    return dict(B=B, C=C, ACC=ACC, Y1=Y1, Y2=Y2, U1=U1, U2=U2, sSEL=sSEL, sK=sK, sONE=sONE, sLUT=sLUT)


DEFST = "flagA,place,lut,b4,exit,b5"


def stamp(a, opt, k, wait=False):
    if opt.stamps and k != 0:
        names = opt.stamps.split(",")
        if k not in names:
            return
        k = 1 + names.index(k)
    if opt.stamps:
        a(f"s_mem{'real' if opt.rt and k else ''}time s[{sST + 2 * k}:{sST + 2 * k + 1}]")
        if k == 0:
            a(f"s_memrealtime s[{sST + 16}:{sST + 17}]")
        if wait:
            a("s_waitcnt lgkmcnt(0)")


def stamp_out(a, opt):
    if not opt.stamps:
        return
    a(f"s_memtime s[{sST + 14}:{sST + 15}]")
    a(f"s_memrealtime s[{sST + 18}:{sST + 19}]")
    a("s_waitcnt vmcnt(0) lgkmcnt(0)")
    a(f"s_getreg_b32 s{sST + 20}, hwreg(HW_REG_HW_ID)")
    a(f"s_getreg_b32 s{sST + 21}, hwreg(HW_REG_XCC_ID)")
    a(f"s_lshl_b32 s{sX0}, s{sQ}, 4")
    a(f"s_add_u32 s{sX0}, s{sX0}, s{sW}")
    a(f"s_lshl_b32 s{sX0}, s{sX0}, 7")
    a(f"s_add_u32 s{sX0}, s{sX0}, {STAMP:#x}")
    a("v_mov_b32 v0, 0")
    for k in range(23):
        a(f"v_mov_b32 v1, s{sST + k if k < 22 else sNP}")
        a(f"buffer_store_dword v1, v0, {sr(sWS, 4)}, s{sX0} offen offset:{4 * k}")


def decode(a, i, t, p):
    a(f"s_cmp_ge_u32 s{i}, {NQ}")
    a(f"s_cselect_b32 s{p}, 1, 0")
    a(f"s_cselect_b32 s{t}, {NQ}, 0")
    a(f"s_sub_u32 s{t}, s{i}, s{t}")


def hop_p(a, tag, nxt, nr, claim=True, dyn=True):
    if claim:
        if dyn:
            a("s_mov_b64 exec, 1")
            a(f"v_mov_b32 v{vT}, 1")
            a(f"ds_add_rtn_u32 v{vT}, v{vRA}, v{vT} offset:12")
            a("s_mov_b64 exec, -1")
            a("s_waitcnt lgkmcnt(0)")
            a(f"v_readfirstlane_b32 s{sPI}, v{vT}")
        else:
            a(f"s_add_u32 s{sPI}, s{sPI}, 16")
        a(f"s_mov_b32 s{sX0}, s{sPI}")
        a(f"s_mov_b32 s{sX1}, 0")
        a(f"s_lshl_b64 {sr(sX0, 2)}, {sr(sX0, 2)}, s{sFCNT}")
        a(f"s_or_b64 {sr(sFIFO, 2)}, {sr(sFIFO, 2)}, {sr(sX0, 2)}")
        a(f"s_add_u32 s{sFCNT}, s{sFCNT}, 8")
    a(f"s_cmp_ge_u32 s{sPI}, {NTASK}")
    a(f"s_cbranch_scc1 hp_end_{tag}")
    decode(a, sPI, sX0, sX1)
    a(f"v_readlane_b32 s{sX2}, v{vTT}, s{sX0}")
    a(f"s_lshl_b32 s{sPR}, s{sX1}, 8")
    if claim:
        a(f"s_andn2_b32 s{sX1}, s{sX1}, s{sOK}")
        a(f"s_cbranch_scc0 hp_ok_{tag}")
        await_second(a, tag)
        a.label(f"hp_ok_{tag}")
    a(f"s_mov_b32 s{sPINC}, {64 * nr}")
    a(f"s_and_b32 s{sX0}, s{sX2}, 0xffff")
    a(f"s_add_u32 s{sX0}, s{sX0}, {LIST - 64 * nxt}")
    a(f"s_lshr_b32 s{sPREM}, s{sX2}, 16")
    a(f"s_branch hp_out_{tag}")
    a.label(f"hp_end_{tag}")
    a(f"s_mov_b32 s{sX0}, {PADA}")
    a(f"s_mov_b32 s{sPINC}, 0")
    a(f"s_mov_b32 s{sPREM}, 0x7fffffff")
    a.label(f"hp_out_{tag}")
    a(f"v_add_u32 v{vLAD}, s{sX0}, v{vLG}")


def switch_in(a, opt, tag):
    decode(a, sCI, sX0, sCPASS)
    a(f"s_lshl_b32 s{sX1}, s{sX0}, 4")
    a(f"v_add_u32 v{vT}, s{sX1}, v{vG4}")
    a(f"ds_read_b32 v{vNC}, v{vT}")
    a(f"v_readlane_b32 s{sX2}, v{vTT}, s{sX0}")
    a(f"s_lshl_b32 s{sX1}, s{sCPASS}, 9")
    a(f"v_add_u32 v{vT}, s{sX1}, v{vCADR}")
    a(f"s_lshr_b32 s{sCREM}, s{sX2}, 16")
    a(f"ds_read_b128 {vr(B, 4)}, v{vT} offset:{B1T - CT}")
    a(f"ds_read_b128 {vr(B + 4, 4)}, v{vT} offset:{B1T - CT + 16}")
    a(f"ds_read_b128 {vr(C, 4)}, v{vT}")
    a(f"ds_read_b128 {vr(C + 4, 4)}, v{vT} offset:16")
    a(f"s_lshl_b32 s{sX1}, s{sCPASS}, 8")
    a(f"s_add_u32 s{sX1}, s{sX1}, {SR}")
    a(f"v_add_u32 v{vSA}, s{sX1}, v{vLP}")
    a(f"s_mov_b32 s{sX1}, {SROW}")
    if opt.prio:
        for lvl, lim in ((3, 13), (2, 25), (1, 38)):
            a(f"s_setprio {lvl}")
            a(f"s_cmp_lt_u32 s{sCI}, {lim}")
            a(f"s_cbranch_scc1 prio_{tag}")
        a("s_setprio 0")
        a.label(f"prio_{tag}")
    a("s_waitcnt lgkmcnt(4)")
    a(f"v_mad_u32_u24 v{vSA}, v{vNC}, s{sX1}, v{vSA}")
    a(f"ds_read_b128 {vr(Y1, 4)}, v{vSA}")
    for i in range(4):
        a(f"v_mov_b64 {vr(ACC + 2 * i, 2)}, 0")
    a("s_waitcnt lgkmcnt(0)")
    for i in range(8):
        a(f"v_dot2_f32_bf16 v{B + i}, v{Y1 + i // 2}, s{sSEL1 if i & 1 else sSEL}, v{B + i}")


def flush(a, tag):
    a(f"s_or_b32 s{sX0}, s{sROUND}, s{sMORE}")
    a(f"s_cbranch_scc0 fl_plain_{tag}")
    a(f"s_mul_i32 s{sX0}, s{sQ}, {100 * 1024}")
    a(f"s_lshl_b32 s{sX1}, s{sCPASS}, 9")
    a(f"s_add_u32 s{sX0}, s{sX0}, s{sX1}")
    a(f"s_add_u32 s{sX0}, s{sX0}, {SAVE:#x}")
    a(f"v_lshlrev_b32 v{vT}, 10, v{vNC}")
    a(f"v_lshl_add_u32 v{vT}, v{vLP}, 1, v{vT}")
    a(f"s_cmp_eq_u32 s{sROUND}, 0")
    a(f"s_cbranch_scc1 fl_noload_{tag}")
    a(f"buffer_load_dwordx4 {vr(Y1, 4)}, v{vT}, {sr(sWS, 4)}, s{sX0} offen sc0 sc1")
    a(f"buffer_load_dwordx4 {vr(Y1 + 4, 4)}, v{vT}, {sr(sWS, 4)}, s{sX0} offen offset:16 sc0 sc1")
    a("s_waitcnt vmcnt(0)")
    for i in range(8):
        a(f"v_add_f32 v{ACC + i}, v{ACC + i}, v{Y1 + i}")
    a.label(f"fl_noload_{tag}")
    a(f"buffer_store_dwordx4 {vr(ACC, 4)}, v{vT}, {sr(sWS, 4)}, s{sX0} offen sc0 sc1")
    a(f"buffer_store_dwordx4 {vr(ACC + 4, 4)}, v{vT}, {sr(sWS, 4)}, s{sX0} offen offset:16 sc0 sc1")
    a("s_waitcnt vmcnt(0)")
    a.label(f"fl_plain_{tag}")
    for m in range(4):
        a(f"v_pk_mul_f32 {vr(ACC + 2 * m, 2)}, {vr(ACC + 2 * m, 2)}, {sr(sSCL if m < 2 else sSCH, 2)}")
    for m in range(4):
        a(f"v_cvt_pk_bf16_f32 v{Y1 + m}, v{ACC + 2 * m}, v{ACC + 2 * m + 1}")
    a(f"ds_write_b128 v{vSA}, {vr(Y1, 4)}")


def rec_read(slot, nr):
    out = [f"ds_read2_b64 {vr(R + 4 * slot, 4)}, v{vLAD} offset0:{8 * slot} offset1:{8 * slot + 4}"]
    if slot == nr - 1:
        out.append(f"v_add_u32 v{vLAD}, s{sPINC}, v{vLAD}")
    return out


EXP = set()
GSC = ''


def gathers(slot):
    r = R + 4 * slot
    if "samerow" in EXP:
        return [f"buffer_load_dwordx4 {vr(G + 8 * slot, 4)}, v{vLG}, {sr(sAG, 4)}, s{sPG} offen",
                f"buffer_load_dwordx4 {vr(G + 8 * slot + 4, 4)}, v{vLG}, {sr(sAG, 4)}, s{sPG} offen"]
    return [f"buffer_load_dwordx4 {vr(G + 8 * slot, 4)}, v{r}, {sr(sAG, 4)}, s{sPG} offen{GSC}",
            f"buffer_load_dwordx4 {vr(G + 8 * slot + 4, 4)}, v{r + 2}, {sr(sAG, 4)}, s{sPG} offen{GSC}"]


def iteration(a, st, opt, ph):
    NR = opt.ring
    RG = regs(opt)
    for x in gathers((ph + NR - 1) % NR):
        st.emit(x)
    for x in S2.tpart(RG, Y1, R + 4 * ph) + S2.tpart(RG, Y2, R + 4 * ph + 2):
        st.emit(x)
    for x in rec_read(ph, NR):
        st.emit(x)
    a(f"s_mov_b32 s{sPG}, s{sPR}")
    a(f"s_sub_u32 s{sPREM}, s{sPREM}, 1")
    a(f"s_cmp_eq_u32 s{sPREM}, 0")
    a(f"s_cbranch_scc1 hookP_{ph}")
    a.label(f"backP_{ph}")
    a(f"s_waitcnt vmcnt({2 * (NR - 1)})")
    lo1, hi1 = S2.zpart(RG, Y1, G + 8 * ph)
    lo2, hi2 = S2.zpart(RG, Y2, G + 8 * ph + 4)
    act = S2.act_pair if opt.pair else S2.act_plain
    if opt.lut:
        HL = RG['HL']
        seq = hi1 + hi2 + S2.lut_issue(RG, Y1, HL, range(4, 8)) + S2.lut_issue(RG, Y2, HL + 4, range(4, 8)) + lo1 + lo2
        body, tail = act(RG, range(2))
        adds = [f"v_pk_add_f32 {vr(ACC + 4 + 2 * m, 2)}, {vr(ACC + 4 + 2 * m, 2)}, {vr(HL + 4 * e + 2 * m, 2)}"
                for e in range(2) for m in range(2)]
        seq += body + adds[:1] + tail + adds[1:]
    else:
        body, tail = act(RG, range(4))
        seq = lo1 + lo2 + hi1 + hi2 + body + [f"s_sub_u32 s{sCREM}, s{sCREM}, 1"] + tail
    for x in seq:
        st.emit(x)
    if opt.lut:
        a(f"s_sub_u32 s{sCREM}, s{sCREM}, 1")
    if opt.stamps:
        a(f"s_add_u32 s{sNP}, s{sNP}, 1")
    a(f"s_cmp_eq_u32 s{sCREM}, 0")
    a(f"s_cbranch_scc1 hookC_{ph}")
    a.label(f"backC_{ph}")


LUT_A = {1: [(16, 1, 0), (80, 1, 0)], 2: [(17, 1, 0), (50, 1, 0), (63, 2, 0)][:2] + [(63, 1, 0)], 3: [(18, 1, 0), (64, 1, 0), (77, 3, 1)],
         4: [(19, 1, 0), (81, 1, 0), (21, 8, 1)], 5: [(20, 1, 0), (82, 1, 0), (29, 9, 1)],
         6: [(83, 1, 0), (38, 12, 1), (65, 12, 1)], 7: [(84, 1, 0), (51, 12, 0)]}
LUT_B = {12: [(1, 5, 1)], 13: [(6, 5, 1)], 14: [(11, 5, 1)], 15: [(0, 1, 0)]}
assert LUTO + 16 * 1024 >= WBI + 63 * 1088 + 1024
assert sorted(p for T in (LUT_A, LUT_B) for w in T.values() for j in w for p in range(j[0], j[0] + j[1])) == list(range(85))


def lut_words():
    def enc(js):
        v = 0
        for i, j in enumerate(js):
            v |= (j[0] | j[1] << 7 | j[2] << 12) << 16 * i
        return v
    out = []
    for w in range(16):
        v = enc(LUT_A.get(w, []) + LUT_B.get(w, []))
        out += [v & 0xffffffff, v >> 32]
    return out


def lut_gen(a, src, tag, bits=32):
    V = Y1
    a(f"s_mov_b64 {sr(sJOB, 2)}, {sr(src, 2)}")
    a.label("lut_job" + tag)
    a(f"s_bfe_u32 s{sX2}, s{sJOB}, 0x50007")
    a(f"s_cmp_eq_u32 s{sX2}, 0")
    a("s_cbranch_scc1 lut_done" + tag)
    a(f"s_and_b32 s{sX3}, s{sJOB}, 0x7f")
    a(f"s_lshl_b32 s{sX0}, s{sX3}, 25")
    a(f"s_or_b32 s{sX0}, s{sX0}, 0x8000")
    a(f"v_lshl_add_u32 v{V}, v{vLANE}, 19, s{sX0}")
    a(f"s_lshl_b32 s{sX1}, s{sX3}, 10")
    a(f"s_add_u32 s{sX1}, s{sX1}, {LUTO}")
    a(f"v_lshl_add_u32 v{V + 8}, v{vLANE}, 4, s{sX1}")
    for i in range(1, 8):
        a(f"v_add_u32 v{V + i}, {i << 16:#x}, v{V}")
    a(f"s_and_b32 s{sX0}, s{sX3}, 63")
    a(f"s_sub_u32 s{sX0}, s{sX0}, 16")
    a(f"s_cmp_lt_u32 s{sX0}, 5")
    a("s_cbranch_scc1 lut_full" + tag)
    a(f"s_mov_b32 s{sX1}, {f32(LN2 * 2.0 ** LUT_SHIFT)}")
    a(f"s_cmp_lt_i32 s{sX0}, 0")
    a(f"s_cselect_b32 s{sX0}, {f32(LN2 * 2.0 ** (LUT_SHIFT - 1))}, s{sX1}")
    a(f"s_mov_b32 s{sX1}, s{sX0}")
    for m in range(4):
        a(f"v_pk_mul_f32 {vr(V + 2 * m, 2)}, {vr(V + 2 * m, 2)}, {sr(sX0, 2)}")
    a("s_branch lut_pack" + tag)
    a.label("lut_full" + tag)
    a(f"s_mov_b32 s{sX0}, {f32(2.0 ** LUT_SHIFT)}")
    a(f"s_mov_b32 s{sX1}, s{sX0}")
    for m in range(4):
        a(f"v_pk_mul_f32 {vr(V + 2 * m, 2)}, {vr(V + 2 * m, 2)}, {sr(sX0, 2)}")
    a(f"s_mov_b32 s{sX0}, {f32(LN2)}")
    a(f"s_mov_b32 s{sX1}, s{sX0}")
    for i in range(8):
        a(f"v_exp_f32 v{U1 + i}, -v{V + i}")
    for m in range(4):
        a(f"v_pk_mul_f32 {vr(V + 2 * m, 2)}, {vr(V + 2 * m, 2)}, {sr(sX0, 2)}")
        a(f"v_pk_add_f32 {vr(U1 + 2 * m, 2)}, {vr(U1 + 2 * m, 2)}, {sr(sONE, 2)}")
    for i in range(8):
        a(f"v_rcp_f32 v{U1 + i}, v{U1 + i}")
    for m in range(4):
        a(f"v_pk_mul_f32 {vr(V + 2 * m, 2)}, {vr(V + 2 * m, 2)}, {vr(U1 + 2 * m, 2)}")
    a.label("lut_pack" + tag)
    for m in range(4):
        a(f"v_cvt_pk_bf16_f32 v{V + 10 + m}, v{V + 2 * m}, v{V + 2 * m + 1}")
    a(f"s_bitcmp1_b32 s{sJOB}, 12")
    a(f"s_cselect_b32 s{sX0}, 0x02000200, 0")
    for k in range(12):
        a(f"ds_write_b128 v{V + 8}, {vr(V + 10 + 4 * (k & 1), 4)} offset:{1024 * k}")
        if k < 11:
            a(f"s_cmp_eq_u32 s{sX2}, {k + 1}")
            a("s_cbranch_scc1 lut_next" + tag)
            for m in range(4):
                a(f"v_add_u32 v{V + 10 + 4 * ((k + 1) & 1) + m}, s{sX0}, v{V + 10 + 4 * (k & 1) + m}")
    a.label("lut_next" + tag)
    a(f"s_lshr_b64 {sr(sJOB, 2)}, {sr(sJOB, 2)}, 16")
    a("s_branch lut_job" + tag)
    a.label("lut_done" + tag)


def swbar(a, grp, tag, vm=None, nap=1, between=None):
    a("s_waitcnt " + (f"vmcnt({vm}) " if vm is not None else "") + "lgkmcnt(0)")
    a(f"s_add_u32 s{sBAR}, s{sBAR}, 8")
    a("s_mov_b64 exec, 1")
    a(f"v_mov_b32 v{vBA}, {SWC + 4 * grp}")
    a(f"v_mov_b32 v{vBV}, 1")
    a(f"ds_add_u32 v{vBA}, v{vBV}")
    if between:
        a("s_mov_b64 exec, -1")
        between()
        a("s_mov_b64 exec, 1")
    a(f"s_mov_b32 s{sSPIN}, 0x4000000")
    a.label(f"sw_{tag}")
    a(f"ds_read_b32 v{vBV}, v{vBA}")
    a(f"s_sub_u32 s{sSPIN}, s{sSPIN}, 1")
    a(f"s_cbranch_scc1 sw_out_{tag}")
    a("s_waitcnt lgkmcnt(0)")
    a(f"v_cmp_gt_u32 vcc, s{sBAR}, v{vBV}")
    a(f"s_cbranch_vccz sw_out_{tag}")
    a(f"s_sleep {nap}")
    a(f"s_branch sw_{tag}")
    a.label(f"sw_out_{tag}")
    a("s_waitcnt lgkmcnt(0)")
    a("s_mov_b64 exec, -1")


def lds_wait(a, addr, target, tag):
    a("s_mov_b64 exec, 1")
    a(f"v_mov_b32 v{vBA}, {addr}")
    a(f"s_mov_b32 s{sSPIN}, 0x4000000")
    a.label(f"lw_{tag}")
    a(f"ds_read_b32 v{vBV}, v{vBA}")
    a(f"s_sub_u32 s{sSPIN}, s{sSPIN}, 1")
    a(f"s_cbranch_scc1 lw_out_{tag}")
    a("s_waitcnt lgkmcnt(0)")
    a(f"v_cmp_gt_u32 vcc, {target}, v{vBV}")
    a(f"s_cbranch_vccz lw_out_{tag}")
    a("s_sleep 2")
    a(f"s_branch lw_{tag}")
    a.label(f"lw_out_{tag}")
    a("s_waitcnt lgkmcnt(0)")
    a("s_mov_b64 exec, -1")


def go_addr(a, ph):
    a(f"v_lshlrev_b32 v{vBA}, 2, v{vLANE}")
    a(f"s_lshr_b32 s{sX0}, s{sID}, 3")
    a(f"s_lshl_b32 s{sX0}, s{sX0}, 7")
    a(f"s_add_u32 s{sX0}, s{sX0}, {GO + 16 * ph:#x}")


def go_init(a, reg):
    go_addr(a, 0)
    a(f"v_mov_b32 v{reg}, 0")
    a("s_mov_b64 exec, 0xfff")
    a(f"buffer_atomic_add v{reg}, v{vBA}, {sr(sWS, 4)}, s{sX0} offen sc0 sc1")
    a("s_mov_b64 exec, -1")


def go_keep(a, reg):
    a(f"v_lshlrev_b32 v{vBA}, 2, v{vLANE}")
    a("s_mov_b64 exec, 0xfff")
    a(f"ds_write_b32 v{vBA}, v{reg} offset:{GOI}")
    a("s_mov_b64 exec, -1")


def publish(a, ph):
    a(f"s_and_b32 s{sX0}, s{sID}, 3")
    a(f"s_lshl_b32 s{sX1}, s{sX0}, 6")
    a("s_mov_b64 exec, 1")
    a(f"v_mov_b32 v{vBV}, 1")
    a(f"v_mov_b32 v{vBA}, s{sX1}")
    a(f"buffer_atomic_add v{vBV}, v{vBA}, {sr(sDBG, 4)}, 0 offen offset:{4 * ph} sc0 sc1")
    a("s_mov_b64 exec, -1")
    a(f"s_lshl_b32 s{sX0}, s{sX0}, 2")
    a(f"s_add_u32 s{sX0}, s{sX0}, {GO + 16 * ph:#x}")
    a("s_waitcnt vmcnt(0)")
    a(f"v_readfirstlane_b32 s{sX1}, v{vBV}")
    a(f"v_lshlrev_b32 v{vBA}, 7, v{vLANE}")
    a(f"v_mov_b32 v{vBV}, 1")
    a(f"s_and_b32 s{sX1}, s{sX1}, {NB // 4 - 1}")
    a(f"s_cmp_lg_u32 s{sX1}, {NB // 4 - 1}")
    a(f"s_cbranch_scc1 pub_done_{ph}")
    a("s_mov_b32 exec_hi, 0")
    a(f"buffer_atomic_add v{vBV}, v{vBA}, {sr(sWS, 4)}, s{sX0} offen sc1")
    a("s_mov_b64 exec, -1")
    a.label(f"pub_done_{ph}")


def await_all(a, ph, tag=''):
    go_addr(a, ph)
    a(f"s_mov_b32 s{sX1}, 0x40000")
    a("s_mov_b64 exec, 15")
    a(f"ds_read_b32 v{vGW}, v{vBA} offset:{GOI + 16 * ph}")
    a.label(f"aw_{ph}{tag}")
    a(f"v_mov_b32 v{vBV}, 0")
    a(f"buffer_atomic_add v{vBV}, v{vBA}, {sr(sWS, 4)}, s{sX0} offen sc0 sc1")
    a(f"s_sub_u32 s{sX1}, s{sX1}, 1")
    a(f"s_cbranch_scc1 aw_done_{ph}{tag}")
    a("s_waitcnt vmcnt(0) lgkmcnt(0)")
    a(f"v_cmp_eq_u32 vcc, v{vGW}, v{vBV}")
    a(f"s_cbranch_vccz aw_done_{ph}{tag}")
    a(f"s_sleep {POLL_NAP}")
    a(f"s_branch aw_{ph}{tag}")
    a.label(f"aw_done_{ph}{tag}")
    a("s_waitcnt vmcnt(0) lgkmcnt(0)")
    a("s_mov_b64 exec, -1")


def await_second(a, tag):
    a(f"v_mov_b32 v{vBA}, 0")
    a(f"ds_read_b32 v{vBV}, v{vBA} offset:{GOI + 48}")
    a("s_waitcnt lgkmcnt(0)")
    a(f"v_readfirstlane_b32 s{sOK}, v{vBV}")
    a(f"s_cmp_lg_u32 s{sOK}, 0")
    a(f"s_cbranch_scc1 as_done_{tag}")
    await_all(a, 2, tag)
    a(f"s_mov_b32 s{sOK}, 1")
    a(f"v_mov_b32 v{vBA}, 0")
    a(f"v_mov_b32 v{vBV}, 1")
    a(f"ds_write_b32 v{vBA}, v{vBV} offset:{GOI + 48}")
    a.label(f"as_done_{tag}")


POLL_NAP = 4
POLL = 'atomic'
vBA, vBV, vGW = 126, 127, 119


def gen_main(a, opt):
    kn = NAME + "_kernel"
    NR = opt.ring
    HS = LOG2E * 2.0 ** -LUT_SHIFT
    a.label(kn)
    stamp(a, opt, 0)
    a(f"s_cmp_ge_u32 s2, {NB}")
    a("s_cbranch_scc1 main_done")
    a("s_load_dwordx8 s[40:47], s[0:1], 0")
    a("s_load_dwordx4 s[52:55], s[0:1], 32")
    a(f"v_lshrrev_b32 v{vT}, 6, v0")
    a(f"v_mov_b32 v{vTID}, v0")
    a(f"v_readfirstlane_b32 s{sW}, v{vT}")
    a(f"s_load_dwordx2 {sr(sW2P, 2)}, s[0:1], 48")
    a("s_load_dwordx4 s[56:59], s[0:1], 56")
    a("s_load_dwordx4 s[60:63], s[0:1], 72")
    a(f"v_and_b32 v{vLANE}, 63, v0")
    a(f"s_cmp_lg_u32 s{sW}, 8")
    a("s_cbranch_scc1 cleared")
    for i in range(4):
        a(f"v_mov_b32 v{4 + i}, 0")
    a(f"v_lshlrev_b32 v8, 4, v{vLANE}")
    a(f"ds_write_b128 v8, v[4:7] offset:{HIST}")
    a(f"ds_write_b128 v4, v[4:7] offset:{SWC}")
    a(f"ds_write_b64 v4, v[4:5] offset:{GOI + 48}")
    a("s_waitcnt lgkmcnt(0)")
    a.label("cleared")
    a("s_barrier")
    a(f"s_and_b32 s{sQ}, s2, 7")
    a(f"s_lshl_b32 s{sQ}, s{sQ}, 5")
    a(f"s_lshr_b32 s{sX0}, s2, 3")
    a(f"s_add_u32 s{sQ}, s{sQ}, s{sX0}")
    a(f"s_mov_b32 s{sROUND}, 0")
    a(f"s_mov_b32 s{sCAP}, {CAP1}")
    a(f"s_mov_b32 s{sBAR}, 0")
    a(f"s_mov_b32 s{sOK}, 0")
    if opt.stamps:
        a(f"s_mov_b32 s{sNP}, 0")
    AD, RK = 24, 36
    vTK, vD, vOF, vS2 = 56, 58, 60, 62
    ONE = vT + 5

    def descriptors():
        srd(a, sWS, 62, 63, WS_BYTES)
        srd(a, sDBG, 60, 61, 256)
        a(f"s_add_u32 s{sA}, s62, {AOFF:#x}")
        a(f"s_addc_u32 s{sA + 1}, s63, 0")
        a(f"s_and_b32 s{sA + 1}, s{sA + 1}, 0xffff")
        a(f"s_mov_b32 s{sA + 2}, {(N + 1) * 512:#x}")
        a(f"s_mov_b32 s{sA + 3}, 0x20000")
        srd(a, sOUT, 58, 59, N * 256)
        a(f"s_add_u32 s{sAG}, s62, {AOFF - 768:#x}")
        a(f"s_addc_u32 s{sAG + 1}, s63, 0")
        a(f"s_and_b32 s{sAG + 1}, s{sAG + 1}, 0xffff")
        a(f"s_or_b32 s{sAG + 1}, s{sAG + 1}, 0x100000")
        a(f"s_mov_b32 s{sAG + 2}, 64")
        a(f"s_mov_b32 s{sAG + 3}, 0x800000")

    def constants():
        a(f"s_mov_b32 s{sSEL}, 0x3f80")
        a(f"s_mov_b32 s{sSEL1}, 0x3f800000")
        a(f"s_mov_b32 s{sLUT}, {LUTO}")
        for r, v in ((sK, 2.0 ** -63), (sONE, 1.0)):
            a(f"s_mov_b32 s{r}, {f32(v)}")
            a(f"s_mov_b32 s{r + 1}, {f32(v)}")
        tsc = LN2 * (2.0 ** -63 if opt.pair else 1.0)
        for r, v in ((sSCL, tsc), (sSCH, 1.0)):
            a(f"s_mov_b32 s{r}, {f32(v)}")
            a(f"s_mov_b32 s{r + 1}, {f32(v)}")
        a(f"v_mov_b32 v{vRA}, {RS}")
        a(f"v_and_b32 v{vLP}, 15, v{vLANE}")
        a(f"v_lshrrev_b32 v{vG4}, 4, v{vLANE}")
        a(f"v_lshlrev_b32 v{vCADR}, 5, v{vLP}")
        a(f"v_add_u32 v{vCADR}, {CT}, v{vCADR}")
        a(f"v_lshlrev_b32 v{vLG}, 3, v{vG4}")
        a(f"v_lshlrev_b32 v{vLP}, 4, v{vLP}")
        a(f"v_lshlrev_b32 v{vG4}, 2, v{vG4}")
        a(f"v_add_u32 v{vG4}, {SN}, v{vG4}")

    a(f"s_cmp_ge_u32 s{sW}, 8")
    a("s_cbranch_scc1 helper")
    cD, cS, cE, cG, cDL, cRK, cRC, t16, t8, tA, tB = 0, 4, 8, 10, 14, 18, 22, 30, 31, 32, 33
    a(f"v_lshlrev_b32 v{t16}, 4, v0")
    a(f"v_lshlrev_b32 v{t8}, 3, v0")
    a(f"s_mul_i32 s{sX0}, s{sID}, 6400")
    a(f"s_mul_i32 s{sX1}, s{sID}, 3200")
    a(f"s_cmp_lt_u32 s{sID}, {NCH}")
    a(f"s_cselect_b32 s{sX2}, {CH // 4}, 0")
    a(f"v_cmp_gt_u32 s[68:69], s{sX2}, v{vTID}")
    a("s_waitcnt lgkmcnt(0)")
    stamp(a, opt, 'karg')
    srd(a, 8, 46, 47, E * 4)
    a(f"buffer_load_dwordx4 {vr(cD, 4)}, v{t16}, s[8:11], s{sX0} offen")
    srd(a, 8, 44, 45, E * 4)
    srd(a, 20, 42, 43, E * 2)
    a(f"buffer_load_dwordx4 {vr(cS, 4)}, v{t16}, s[8:11], s{sX0} offen")
    a(f"buffer_load_dwordx2 {vr(cE, 2)}, v{t8}, s[20:23], s{sX1} offen")
    descriptors()
    GP = 50
    a(f"s_cmp_lg_u32 s{sW}, 0")
    a("s_cbranch_scc1 no_go_a")
    go_init(a, GP)
    a.label("no_go_a")
    a(f"v_mov_b32 v{tB}, 1")
    a("s_mov_b64 exec, s[68:69]")
    a("s_waitcnt vmcnt(2)")
    stamp(a, opt, 'edges', True)
    for i in range(4):
        d, g, dl = cD + i, cG + i, cDL + i
        a(f"v_mul_u32_u24 v{g}, {BMAGIC}, v{d}")
        a(f"v_lshrrev_b32 v{g}, {BSHIFT}, v{g}")
        a(f"v_mul_u32_u24 v{dl}, {BN}, v{g}")
        a(f"v_lshlrev_b32 v{g}, 2, v{g}")
        a(f"v_sub_u32 v{dl}, v{d}, v{dl}")
        a(f"ds_add_rtn_u32 v{cRK + i}, v{g}, v{tB} offset:{HIST}")
    a("s_waitcnt vmcnt(0)")
    for i in range(4):
        a(f"v_lshl_or_b32 v{cRC + 2 * i}, v{cS + i}, 9, v{cDL + i}")
        if i & 1:
            a(f"v_and_b32 v{cRC + 1 + 2 * i}, 0xffff0000, v{cE + i // 2}")
        else:
            a(f"v_lshlrev_b32 v{cRC + 1 + 2 * i}, 16, v{cE + i // 2}")
    a("s_mov_b64 exec, -1")
    a(f"s_cmp_lg_u32 s{sW}, 0")
    a("s_cbranch_scc1 no_keep")
    go_keep(a, GP)
    a.label("no_keep")
    stamp(a, opt, 'p1')
    swbar(a, 0, "c1")
    a(f"s_cmp_lg_u32 s{sW}, 7")
    a("s_cbranch_scc1 no_scan")
    h0, b0 = 36, 40
    a(f"v_lshlrev_b32 v{tA}, 4, v{vLANE}")
    a(f"ds_read_b128 {vr(h0, 4)}, v{tA} offset:{HIST}")
    a(f"s_lshl_b32 s{sX0}, s{sID}, 2")
    a(f"s_add_u32 s{sX0}, s{sX0}, {TAB:#x}")
    a(f"v_lshlrev_b32 v{tB}, 12, v{vLANE}")
    a("s_waitcnt lgkmcnt(0)")
    a(f"v_add_u32 v{b0 + 1}, v{h0}, v{h0 + 1}")
    a(f"v_add_u32 v{b0 + 2}, v{b0 + 1}, v{h0 + 2}")
    a(f"v_add_u32 v{b0 + 3}, v{b0 + 2}, v{h0 + 3}")
    a(f"v_mov_b32 v{b0 + 4}, v{b0 + 3}")
    dpp_scan(a, b0 + 4)
    a(f"v_sub_u32 v{b0}, v{b0 + 4}, v{b0 + 3}")
    a(f"v_add_u32 v{b0 + 3}, v{b0}, v{b0 + 2}")
    a(f"v_add_u32 v{b0 + 2}, v{b0}, v{b0 + 1}")
    a(f"v_add_u32 v{b0 + 1}, v{b0}, v{h0}")
    a(f"ds_write_b128 v{tA}, {vr(b0, 4)} offset:{HIST}")
    a(f"s_cmp_lg_u32 s{sID}, 64")
    a("s_cbranch_scc1 no_sink")
    lo = bf16_bits(-2.0 ** PADVAL_EXP)
    hi = bf16_bits(-2.0 ** (PADVAL_EXP - LUT_SHIFT))
    for i in range(4):
        a(f"v_mov_b32 v{4 + i}, {(hi << 16) | lo:#x}")
    a(f"s_mov_b32 s{sX1}, {AOFF + N * 512:#x}")
    a("s_mov_b32 exec_hi, 0")
    a(f"buffer_store_dwordx4 v[4:7], v{tA}, {sr(sWS, 4)}, s{sX1} offen sc1")
    a("s_mov_b64 exec, -1")
    a.label("no_sink")
    a(f"s_cmp_ge_u32 s{sID}, {NCH}")
    a("s_cbranch_scc1 no_scan")
    for i in range(4):
        a(f"v_lshl_or_b32 v{h0 + i}, v{h0 + i}, 16, v{b0 + i}")
        a(f"buffer_store_dword v{h0 + i}, v{tB}, {sr(sWS, 4)}, s{sX0} offen offset:{i * 1024} sc1")
    a.label("no_scan")
    stamp(a, opt, 'p2')
    swbar(a, 0, "c2")
    a("s_mov_b64 exec, s[68:69]")
    for i in range(4):
        a(f"ds_read_b32 v{cG + i}, v{cG + i} offset:{HIST}")
    a("s_waitcnt lgkmcnt(0)")
    for i in range(4):
        a(f"v_add_lshl_u32 v{cG + i}, v{cG + i}, v{cRK + i}, 3")
        a(f"ds_write_b64 v{cG + i}, {vr(cRC + 2 * i, 2)} offset:{STG}")
    stamp(a, opt, 'p3')
    swbar(a, 0, "c3")
    a(f"s_cmp_ge_u32 s{sID}, {NCH}")
    a("s_cbranch_scc1 copied")
    a(f"ds_read_b128 {vr(cD, 4)}, v{t16} offset:{STG}")
    a(f"ds_read_b128 {vr(cS, 4)}, v{t16} offset:{STG + 8192}")
    a(f"s_mul_i32 s{sX0}, s{sID}, {CH * 8}")
    a(f"v_add_u32 v{tA}, 8192, v{t16}")
    a("s_waitcnt lgkmcnt(1)")
    a(f"buffer_store_dwordx4 {vr(cD, 4)}, v{t16}, {sr(sWS, 4)}, s{sX0} offen sc1")
    a(f"v_cmpx_gt_u32 vcc, {CH * 8 - 8192}, v{t16}")
    a("s_cbranch_execz copied")
    a("s_waitcnt lgkmcnt(0)")
    a(f"buffer_store_dwordx4 {vr(cS, 4)}, v{tA}, {sr(sWS, 4)}, s{sX0} offen sc1")
    a.label("copied")
    a("s_mov_b64 exec, -1")
    stamp(a, opt, 'copy')
    a(f"s_getpc_b64 {sr(sTMP, 2)}")
    a.label("pc_here_c")
    a(f"s_add_u32 s{sTMP}, s{sTMP}, lut_jobs - pc_here_c")
    a(f"s_addc_u32 s{sTMP + 1}, s{sTMP + 1}, 0")
    a(f"s_lshl_b32 s{sX1}, s{sW}, 3")
    a(f"s_load_dwordx2 {sr(sJOBS, 2)}, {sr(sTMP, 2)}, s{sX1}")
    constants()
    swbar(a, 0, "c4", 0)
    stamp(a, opt, 'drain')
    a(f"s_cmp_lg_u32 s{sW}, 0")
    a("s_cbranch_scc1 not_w0")
    publish(a, 0)
    a.label("not_w0")
    a(f"s_cmp_eq_u32 s{sW}, 2")
    a("s_cbranch_scc1 cb_tables")
    a(f"s_cmp_eq_u32 s{sW}, 3")
    a("s_cbranch_scc1 frag_w2")
    a(f"s_cmp_lg_u32 s{sW}, 1")
    a("s_cbranch_scc1 chain_init")
    a(f"v_lshlrev_b32 v{vT + 1}, 3, v{vLANE}")
    a(f"v_mov_b32 v{vT + 2}, 0")
    a(f"v_mov_b32 v{vT + 3}, 0")
    a(f"ds_write_b64 v{vT + 1}, {vr(vT + 2, 2)} offset:{DEGT}")
    a.label("chain_init")
    a(f"v_lshlrev_b32 v{vT}, 4, v{vTID}")
    a(f"v_and_b32 v64, 1, v{vTID}")
    a("v_lshlrev_b32 v64, 9, v64")
    a(f"v_sub_u32 v64, {PADREC + 768:#x}, v64")
    a("v_mov_b32 v65, 0")
    a("v_subrev_u32 v66, 256, v64")
    a("v_mov_b32 v67, 0")
    a(f"ds_write_b128 v{vT}, v[64:67] offset:{LIST}")
    a(f"ds_write_b128 v{vT}, v[64:67] offset:{LIST + 8192}")
    a(f"s_cmp_ge_u32 s{sW}, 3")
    a("s_cbranch_scc1 init_done")
    a(f"v_cmpx_gt_u32 vcc, {(CT - LIST - 16384) // 16}, v{vTID}")
    a(f"ds_write_b128 v{vT}, v[64:67] offset:{LIST + 16384}")
    a(f"v_cmpx_gt_u32 vcc, {(DEGT - DEG) // 16}, v{vTID}")
    a("v_mov_b32 v64, 0")
    a("v_mov_b32 v66, 0")
    a(f"ds_write_b128 v{vT}, v[64:67] offset:{DEG}")
    a("s_mov_b64 exec, -1")
    a.label("init_done")
    a(f"s_cmp_lg_u32 s{sROUND}, 0")
    a("s_cbranch_scc1 no_wait_a")
    a(f"s_cmp_lg_u32 s{sCAP}, {CAP1}")
    a("s_cbranch_scc1 no_wait_a")
    a(f"s_cmp_eq_u32 s{sW}, 0")
    a("s_cbranch_scc1 wait_a")
    lds_wait(a, SWC + 8, 8, "wa")
    stamp(a, opt, 'wa')
    lut_gen(a, sJOBS, "_c")
    stamp(a, opt, 'lutc')
    a("s_branch no_wait_a")
    a.label("wait_a")
    await_all(a, 0)
    a.label("no_wait_a")
    swbar(a, 0, "c5", None, 3)
    stamp(a, opt, 'flagA')
    a(f"s_cmp_lg_u32 s{sROUND}, 0")
    a("s_cbranch_scc1 have_table")
    a(f"s_cmp_lg_u32 s{sCAP}, {CAP1}")
    a("s_cbranch_scc1 have_table")
    a(f"v_and_b32 v{vT}, -4, v{vTID}")
    a(f"s_lshl_b32 s{sX0}, s{sQ}, 10")
    a(f"s_add_u32 s{sX0}, s{sX0}, {TAB:#x}")
    a(f"buffer_load_dword v{vCUR}, v{vT}, {sr(sWS, 4)}, s{sX0} offen sc1")
    a(f"buffer_load_dword v{vCUR2}, v{vT}, {sr(sWS, 4)}, s{sX0} offen offset:512 sc1")
    a(f"v_cmp_gt_u32 vcc, {(NCH - 128) * 4}, v{vTID}")
    a("s_waitcnt vmcnt(0)")
    stamp(a, opt, 'tab')
    a(f"v_lshrrev_b32 v{vREM2}, 16, v{vCUR2}")
    a(f"v_lshrrev_b32 v{vREM}, 16, v{vCUR}")
    a(f"v_and_b32 v{vCUR}, 0xffff, v{vCUR}")
    a(f"v_and_b32 v{vCUR2}, 0xffff, v{vCUR2}")
    a(f"v_cndmask_b32 v{vREM2}, 0, v{vREM2}, vcc")
    a.label("have_table")
    FR = ((vCUR, vREM), (vCUR2, vREM2))
    a(f"v_lshrrev_b32 v{vT}, 2, v{vTID}")
    a(f"v_and_b32 v{vS2}, 3, v{vTID}")
    a(f"v_mul_u32_u24 v{vT}, {CH * 8}, v{vT}")
    a(f"v_lshl_add_u32 v{vT}, v{vS2}, 4, v{vT}")
    a(f"v_lshlrev_b32 v{vS2}, 1, v{vS2}")
    for f, (cur, rem) in enumerate(FR):
        a(f"v_min_u32 v{vTK + f}, 24, v{rem}")
        a(f"v_lshl_add_u32 v{vOF + f}, v{cur}, 3, v{vT}")
        a(f"v_sub_u32 v{vD + f}, v{vTK + f}, v{vS2} clamp")
    a(f"s_mov_b32 s{sX0}, {128 * CH * 8}")
    for i in range(3):
        for f in range(2):
            a(f"v_cmp_lt_u32 vcc, {8 * i}, v{vD + f}")
            a("s_mov_b64 exec, vcc")
            a(f"s_cbranch_execz rec_skip_{i}{f}")
            a(f"buffer_load_dwordx4 {vr(12 * f + 4 * i, 4)}, v{vOF + f}, {sr(sWS, 4)}, {f's{sX0}' if f else '0'} offen offset:{64 * i} sc1")
            a.label(f"rec_skip_{i}{f}")
            a("s_mov_b64 exec, -1")
    stamp(a, opt, 'iss')
    a(f"v_mov_b32 v{ONE}, 1")
    a(f"s_cmp_eq_u32 s{sCAP}, {CAP1}")
    a("s_cbranch_scc1 admitted")
    a(f"v_cmpx_eq_u32 vcc, 0, v{vS2}")
    a(f"ds_add_rtn_u32 v{vT}, v{vRA}, v{vTK}")
    a(f"ds_add_rtn_u32 v{vT + 1}, v{vRA}, v{vTK + 1}")
    a("s_mov_b64 exec, -1")
    a(f"v_mov_b32 v{vT + 3}, s{sCAP}")
    a("s_waitcnt lgkmcnt(0)")
    a("s_nop 2")
    for f in range(2):
        a(f"v_mov_b32_dpp v{vT + f}, v{vT + f} quad_perm:[0,0,0,0] row_mask:0xf bank_mask:0xf")
        a(f"v_sub_u32 v{vT + f}, v{vT + 3}, v{vT + f} clamp")
        a(f"v_min_u32 v{vTK + f}, v{vTK + f}, v{vT + f}")
        a(f"v_sub_u32 v{vD + f}, v{vTK + f}, v{vS2} clamp")
    a.label("admitted")
    a(f"v_cmp_lt_u32 vcc, v{vTK}, v{vREM}")
    a(f"v_cmp_lt_u32 s[20:21], v{vTK + 1}, v{vREM2}")
    a("s_or_b64 exec, vcc, s[20:21]")
    a("s_cbranch_execz no_more")
    a(f"ds_write_b32 v{vRA}, v{ONE} offset:4")
    a.label("no_more")
    a("s_mov_b64 exec, -1")
    a(f"v_max_u32 v{vT + 3}, v{vD}, v{vD + 1}")
    a(f"v_cmp_lt_u32 s[68:69], 16, v{vT + 3}")
    a("s_waitcnt vmcnt(0)")
    stamp(a, opt, 'rec')
    SL = [(f, 12 * f + 4 * i + 2 * b, 8 * i + b) for i in range(3) for f in range(2) for b in range(2)]

    def masked(j):
        f, r, th = SL[j]
        if j % 2 == 0 and j:
            a("s_mov_b64 exec, -1")
        a(f"v_cmpx_lt_u32 vcc, {th}, v{vD + f}")
        return r

    for j in range(12):
        if j == 8:
            a("s_cmp_eq_u64 s[68:69], 0")
            a("s_cbranch_scc1 ranked")
        r = masked(j)
        a(f"v_and_b32 v{AD + j}, 0x7f, v{r}")
        a(f"v_lshlrev_b32 v{AD + j}, 2, v{AD + j}")
        a(f"v_and_b32 v{r}, 0xfffffe00, v{r}")
        a(f"v_min_u32 v{r}, {PADREC:#x}, v{r}")
        a(f"ds_add_rtn_u32 v{RK + j}, v{AD + j}, v{ONE} offset:{DEG}")
    a.label("ranked")
    swbar(a, 0, "c6")
    stamp(a, opt, 'rank')
    a(f"s_cmp_eq_u32 s{sW}, 0")
    a("s_cbranch_scc1 sorter")
    if opt.pf:
        a(f"s_cmp_gt_u32 s{sW}, {opt.pf}")
        a("s_cbranch_scc1 sorted")
        go_addr(a, 1)
        a("s_mov_b64 exec, 15")
        a(f"ds_read_b32 v{vGW}, v{vBA} offset:{GOI + 16}")
        a(f"v_mov_b32 v{vBV}, 0")
        a(f"buffer_atomic_add v{vBV}, v{vBA}, {sr(sWS, 4)}, s{sX0} offen sc0 sc1")
        a("s_waitcnt vmcnt(0) lgkmcnt(0)")
        a(f"v_cmp_eq_u32 vcc, v{vGW}, v{vBV}")
        a("s_mov_b64 exec, -1")
        a("s_cbranch_vccnz sorted")
        a(f"v_mov_b32 v{vBA}, 0")
        a(f"ds_write_b32 v{vBA}, v{ONE} offset:{GOI + 52}")
        a(f"v_cmpx_lt_u32 vcc, 0, v{vD}")
        a("s_cbranch_execz pf_done")
        a(f"buffer_load_dword v{vGW}, v0, {sr(sA, 4)}, 0 offen")
        a(f"buffer_load_dword v{vGW}, v0, {sr(sA, 4)}, 0 offen offset:128")
        a.label("pf_done")
        a("s_mov_b64 exec, -1")
    a("s_branch sorted")
    a.label("sorter")
    a("s_setprio 3")
    d0, d1, k0, k1, r0, r1, x0, x1 = range(Y1, Y1 + 8)
    l4, n1, h_, sp, e0, e1, e2, e3 = range(Y2, Y2 + 8)
    a(f"v_lshlrev_b32 v{l4}, 2, v{vLANE}")
    a(f"v_add_u32 v{x0}, {DEG}, v{l4}")
    a(f"ds_read_b32 v{d0}, v{x0}")
    a(f"ds_read_b32 v{d1}, v{x0} offset:256")
    a(f"v_cmp_gt_u32 s[20:21], {4 * NQ - 64}, v{vLANE}")
    a(f"v_add_u32 v{n1}, 64, v{vLANE}")
    a(f"v_mov_b32 v{vT + 3}, {DH}")
    a(f"v_mov_b32 v{vT + 2}, 16")
    a(f"ds_write_b32 v{vRA}, v{vT + 2} offset:12")
    a("s_waitcnt lgkmcnt(1)")
    for d, k in ((d0, k0), (d1, k1)):
        a(f"v_add_u32 v{k}, 1, v{d}")
        a(f"v_lshrrev_b32 v{k}, 1, v{k}")
        a(f"v_min_u32 v{k}, 63, v{k}")
        a(f"v_sub_u32 v{k}, 63, v{k}")
        a(f"v_lshlrev_b32 v{k}, 2, v{k}")
    a(f"v_add_u32 v{e0}, v{vT + 3}, v{k0}")
    a(f"v_add_u32 v{e1}, v{vT + 3}, v{k1}")
    a(f"ds_add_rtn_u32 v{r0}, v{e0}, v{ONE}")
    a("s_mov_b64 exec, s[20:21]")
    a(f"ds_add_rtn_u32 v{r1}, v{e1}, v{ONE}")
    a("s_mov_b64 exec, -1")
    a(f"ds_read_b32 v{h_}, v{x0} offset:{DH - DEG}")
    a("s_waitcnt lgkmcnt(0)")
    a(f"v_mov_b32 v{sp}, v{h_}")
    dpp_scan(a, sp)
    a(f"v_sub_u32 v{sp}, v{sp}, v{h_}")
    a(f"ds_bpermute_b32 v{k0}, v{k0}, v{sp}")
    a(f"ds_bpermute_b32 v{k1}, v{k1}, v{sp}")
    a(f"v_mov_b32 v{vT + 3}, {SN}")
    a("s_waitcnt lgkmcnt(0)")
    a(f"v_add_u32 v{r0}, v{r0}, v{k0}")
    a(f"v_add_u32 v{r1}, v{r1}, v{k1}")
    a(f"v_lshl_add_u32 v{e0}, v{r0}, 2, v{vT + 3}")
    a(f"v_lshl_add_u32 v{e1}, v{r1}, 2, v{vT + 3}")
    a(f"ds_write_b32 v{e0}, v{vLANE}")
    a(f"ds_write_b32 v{e0}, v{d0} offset:{SD - SN}")
    a("s_mov_b64 exec, s[20:21]")
    a(f"ds_write_b32 v{e1}, v{n1}")
    a(f"ds_write_b32 v{e1}, v{d1} offset:{SD - SN}")
    a("s_mov_b64 exec, -1")
    a(f"v_lshlrev_b32 v{h_}, 4, v{vLANE}")
    a(f"v_add_u32 v{h_}, {SD}, v{h_}")
    a(f"ds_read_b128 {vr(e0, 4)}, v{h_}")
    a(f"v_cmp_gt_u32 vcc, {NQ}, v{vLANE}")
    a("s_waitcnt lgkmcnt(0)")
    a(f"v_max3_u32 v{h_}, v{e0}, v{e1}, v{e2}")
    a(f"v_max_u32 v{h_}, v{h_}, v{e3}")
    a(f"v_add_u32 v{h_}, 1, v{h_}")
    a(f"v_lshrrev_b32 v{h_}, 1, v{h_}")
    a(f"v_max_u32 v{h_}, 1, v{h_}")
    a(f"v_cndmask_b32 v{h_}, 0, v{h_}, vcc")
    a(f"v_mov_b32 v{sp}, v{h_}")
    dpp_scan(a, sp)
    a("s_nop 0")
    a(f"v_readlane_b32 s{sX0}, v{sp}, 63")
    a(f"v_sub_u32 v{sp}, v{sp}, v{h_}")
    a(f"v_lshlrev_b32 v{sp}, 6, v{sp}")
    a(f"v_and_b32 v{k0}, -4, v{r0}")
    a(f"v_and_b32 v{k1}, -4, v{r1}")
    a(f"ds_bpermute_b32 v{k0}, v{k0}, v{sp}")
    a(f"ds_bpermute_b32 v{k1}, v{k1}, v{sp}")
    a(f"v_lshl_or_b32 v{h_}, v{h_}, 16, v{sp}")
    a(f"v_cmpx_gt_u32 vcc, 32, v{vLANE}")
    a(f"ds_write_b32 v{x0}, v{h_} offset:{TT - DEG}")
    a("s_mov_b64 exec, -1")
    a(f"s_cmp_gt_u32 s{sX0}, {LCAP // 8}")
    a("s_cbranch_scc0 fits")
    a(f"ds_write_b32 v{vRA}, v{ONE} offset:8")
    a("s_branch sorted")
    a.label("fits")
    a(f"v_and_b32 v{r0}, 3, v{r0}")
    a(f"v_and_b32 v{r1}, 3, v{r1}")
    a(f"ds_add_u32 v{x0}, v{d0} offset:{DEGT - DEG}")
    a("s_waitcnt lgkmcnt(1)")
    a(f"v_lshl_add_u32 v{k0}, v{r0}, 3, v{k0}")
    a(f"v_lshl_add_u32 v{k1}, v{r1}, 3, v{k1}")
    a(f"ds_write_b32 v{x0}, v{k0} offset:{NBT - DEG}")
    a("s_mov_b64 exec, s[20:21]")
    a(f"ds_write_b32 v{x0}, v{k1} offset:{NBT - DEG + 256}")
    a(f"ds_add_u32 v{x0}, v{d1} offset:{DEGT - DEG + 256}")
    a("s_mov_b64 exec, -1")
    a.label("sorted")
    swbar(a, 0, "c7")
    stamp(a, opt, 'sort')
    a(f"ds_read_b32 v{vT + 3}, v{vRA} offset:8")
    for j in range(8):
        if j % 2 == 0:
            masked(j)
        a(f"ds_read_b32 v{AD + j}, v{AD + j} offset:{NBT}")
    a("s_mov_b64 exec, -1")
    a("s_nop 0")
    a("s_waitcnt lgkmcnt(0)")
    a(f"v_readfirstlane_b32 s{sX0}, v{vT + 3}")
    a(f"s_cmp_eq_u32 s{sX0}, 0")
    a("s_cbranch_scc1 place")
    a("s_setprio 0")
    a(f"s_mov_b32 s{sCAP}, {CAP2}")
    swbar(a, 0, "c8")
    a("s_branch chain_init")
    a.label("place")
    for j in range(12):
        if j == 8:
            a("s_cmp_eq_u64 s[68:69], 0")
            a("s_cbranch_scc1 placed")
            a("s_mov_b64 exec, -1")
            for k in range(8, 12):
                a(f"ds_read_b32 v{AD + k}, v{AD + k} offset:{NBT}")
            a("s_waitcnt lgkmcnt(0)")
        r = masked(j)
        a(f"v_bitop3_b32 v{vT}, v{AD + j}, 24, v{AD + j} bitop3:0x0c")
        a(f"v_lshl_add_u32 v{AD + j}, v{RK + j}, 5, v{AD + j}")
        a(f"v_lshl_add_u32 v{r}, v{vT}, 5, v{r}")
        a(f"ds_write_b64 v{AD + j}, {vr(r, 2)} offset:{LIST}")
    a.label("placed")
    a("s_mov_b64 exec, -1")
    stamp(a, opt, 'place')
    for f, (cur, rem) in enumerate(FR):
        a(f"v_add_u32 v{cur}, v{cur}, v{vTK + f}")
        a(f"v_sub_u32 v{rem}, v{rem}, v{vTK + f}")
    a("s_branch joined")
    a.label("cb_tables")
    srd(a, sTMP, sB1P, sB1P + 1, 512)
    srd(a, 8, sW1P, sW1P + 1, 257 * 512)
    a(f"v_lshrrev_b32 v0, 5, v{vLANE}")
    a(f"v_bfe_u32 v1, v{vLANE}, 1, 4")
    a(f"v_and_b32 v2, 1, v{vLANE}")
    a("v_lshl_add_u32 v3, v0, 7, v1")
    a("v_lshl_add_u32 v3, v2, 4, v3")
    a("v_lshlrev_b32 v3, 1, v3")
    a(f"s_mov_b32 s{sX0}, {256 * 512}")
    for t in range(4):
        a(f"buffer_load_ushort v{4 + t}, v3, {sr(sTMP, 4)}, 0 offen offset:{t * 64}")
        a(f"buffer_load_ushort v{8 + t}, v3, s[8:11], s{sX0} offen offset:{t * 64}")
    a("v_cmp_eq_u32 vcc, 1, v2")
    a(f"v_mov_b32 v12, {f32(LOG2E)}")
    a(f"v_mov_b32 v13, {f32(HS)}")
    a("v_cndmask_b32 v12, v12, v13, vcc")
    a(f"v_lshlrev_b32 v14, 4, v{vLANE}")
    a("s_waitcnt vmcnt(0)")
    for t in range(8):
        a(f"v_lshlrev_b32 v{4 + t}, 16, v{4 + t}")
        a(f"v_mul_f32 v{4 + t}, v{4 + t}, v12")
    a(f"ds_write_b128 v14, v[8:11] offset:{CT}")
    a(f"ds_write_b128 v14, v[4:7] offset:{B1T}")
    a("s_branch chain_init")
    a.label("frag_w2")
    a(f"s_cmp_ge_u32 s{sID}, 64")
    a("s_cbranch_scc1 chain_init")
    srd(a, sTMP, sW2P, sW2P + 1, 256 * 256)
    a(f"v_and_b32 v16, 31, v{vLANE}")
    a(f"v_lshrrev_b32 v0, 5, v{vLANE}")
    a(f"s_and_b32 s{sX0}, s{sID}, 7")
    a(f"s_lshl_b32 s{sX0}, s{sX0}, 1")
    a(f"s_bfe_u32 s{sX1}, s{sID}, 0x10003")
    a(f"s_lshl_b32 s{sX1}, s{sX1}, 7")
    a(f"s_add_u32 s{sX0}, s{sX0}, s{sX1}")
    a(f"v_add_u32 v17, s{sX0}, v0")
    a("v_lshlrev_b32 v17, 8, v17")
    a(f"s_lshr_b32 s{sX0}, s{sID}, 4")
    a(f"s_lshl_b32 s{sX0}, s{sX0}, 6")
    a(f"v_add_u32 v17, s{sX0}, v17")
    a("v_bfe_u32 v18, v16, 2, 1")
    a("v_lshl_add_u32 v17, v18, 5, v17")
    a("v_lshrrev_b32 v18, 3, v16")
    a("v_lshl_add_u32 v17, v18, 3, v17")
    a("v_and_b32 v18, 3, v16")
    a("v_lshl_add_u32 v17, v18, 1, v17")
    for t, c in enumerate((0, 2, 4, 6, 1, 3, 5, 7)):
        a(f"s_mov_b32 s{sX0}, {c * 4096}")
        a(f"buffer_load_ushort v{20 + t}, v17, {sr(sTMP, 4)}, s{sX0} offen")
    a(f"s_lshl_b32 s{sX0}, s{sID}, 10")
    a(f"s_add_u32 s{sX0}, s{sX0}, {W2F:#x}")
    a(f"v_lshlrev_b32 v14, 4, v{vLANE}")
    a("s_waitcnt vmcnt(0)")
    for t in range(4):
        a(f"v_lshl_or_b32 v{16 + t}, v{21 + 2 * t}, 16, v{20 + 2 * t}")
    a(f"buffer_store_dwordx4 v[16:19], v14, {sr(sWS, 4)}, s{sX0} offen sc1")
    a("s_branch chain_init")
    a.label("helper")
    HA, XF, WR = 0, 64, 96
    vTA0, vTA1, vSO, vWS, vXS, vP = 114, 115, 116, 117, 118, 120
    sHW, sRT, sWO, sMO = 28, 29, 30, 31

    def helper_setup():
        a(f"s_sub_u32 s{sHW}, s{sW}, 8")
        a(f"v_lshrrev_b32 v{vP}, 5, v{vLANE}")
        a(f"v_lshlrev_b32 v{vP + 1}, 1, v{vP}")
        a(f"v_and_b32 v{vWS}, 31, v{vLANE}")
        a(f"v_xor_b32 v{vWS}, v{vWS}, v{vP + 1}")
        a(f"v_lshlrev_b32 v{vWS}, 4, v{vWS}")
        a(f"v_lshl_add_u32 v{vWS}, v{vP}, 9, v{vWS}")
        a(f"s_and_b32 s{sWO}, s{sHW}, 3")
        a(f"s_lshl_b32 s{sWO}, s{sWO}, 12")
        a(f"s_lshr_b32 s{sX0}, s{sHW}, 2")
        a(f"s_lshl_b32 s{sX0}, s{sX0}, 11")
        a(f"s_add_u32 s{sWO}, s{sWO}, s{sX0}")
        a(f"s_mul_i32 s{sMO}, s{sHW}, {2 * 1088}")
        a(f"s_lshr_b32 s{sRT}, s{sID}, 2")
        a(f"s_and_b32 s{sRT}, s{sRT}, 2")
        a(f"s_mul_i32 s{sX3}, s{sQ}, {BN}")
        a(f"s_and_b32 s{sX0}, s{sHW}, 3")
        a(f"s_lshl_b32 s{sX0}, s{sX0}, 5")
        a(f"s_add_u32 s{sX3}, s{sX3}, s{sX0}")
        a(f"v_and_b32 v{vP}, 15, v{vLANE}")
        a(f"v_lshrrev_b32 v{vP + 1}, 4, v{vLANE}")
        a(f"v_xor_b32 v{vXS}, v{vP}, v{vP + 1}")
        a(f"v_lshlrev_b32 v{vXS}, 4, v{vXS}")
        a(f"v_lshl_add_u32 v{vXS}, v{vP + 1}, 8, v{vXS}")

    def wdma(i, img, src):
        a(f"s_add_u32 s{sX0}, s{sRT}, {i}")
        a(f"s_and_b32 s{sX0}, s{sX0}, 3")
        a(f"s_lshl_b32 s{sX1}, s{sX0}, 14")
        a(f"s_add_u32 s{sX1}, s{sX1}, s{sWO}")
        if src:
            a(f"s_add_u32 s{sX1}, s{sX1}, {src}")
        a(f"s_add_u32 m0, s{sMO}, {img + 16 * i * 1088}")
        a("s_nop 0")
        a(f"buffer_load_dwordx4 v{vWS}, s[32:35], s{sX1} offen lds")
        a(f"s_add_u32 m0, s{sMO}, {img + (16 * i + 1) * 1088}")
        a(f"s_add_u32 s{sX1}, s{sX1}, 1024")
        a(f"buffer_load_dwordx4 v{vWS}, s[32:35], s{sX1} offen lds")

    def xdma(tag):
        a(f"s_mul_i32 s{sX2}, s{sQ}, {BN * 256}")
        for k in range(4):
            if k == 3:
                a(f"s_cmp_lg_u32 s{sW}, 8")
                a(f"s_cbranch_scc1 x_issued{tag}")
            a(f"s_add_u32 s{sX1}, s{sHW}, {8 * k}")
            a(f"s_mul_i32 s{sX0}, s{sX1}, 1088")
            a(f"s_add_u32 m0, s{sX0}, {WBI}")
            a(f"s_lshl_b32 s{sX1}, s{sX1}, 10")
            a(f"s_add_u32 s{sX1}, s{sX1}, s{sX2}")
            a(f"buffer_load_dwordx4 v{vXS}, {sr(sX, 4)}, s{sX1} offen lds")
        a.label(f"x_issued{tag}")

    def xfrags():
        a(f"v_and_b32 v{vP}, 15, v{vLANE}")
        a(f"v_lshrrev_b32 v{vP + 1}, 4, v{vLANE}")
        a(f"v_lshrrev_b32 v{WR}, 2, v{vP}")
        a(f"v_mul_u32_u24 v{WR}, 1088, v{WR}")
        a(f"v_and_b32 v{WR + 1}, 3, v{vP}")
        a(f"v_lshl_add_u32 v{WR}, v{WR + 1}, 8, v{WR}")
        a(f"v_xor_b32 v{WR + 1}, v{WR + 1}, v{vP + 1}")
        a(f"v_lshl_add_u32 v{WR}, v{WR + 1}, 4, v{WR}")
        a(f"s_and_b32 s{sX0}, s{sHW}, 3")
        a(f"s_mul_i32 s{sX0}, s{sX0}, {8 * 1088}")
        a(f"s_add_u32 s{sX0}, s{sX0}, {WBI}")
        a(f"s_lshl_b32 s{sX1}, s{sRT}, 6")
        a(f"s_add_u32 s{sX1}, s{sX1}, s{sX0}")
        a(f"v_add_u32 v{WR + 1}, s{sX1}, v{WR}")
        a(f"s_xor_b32 s{sX1}, s{sRT}, 2")
        a(f"s_lshl_b32 s{sX1}, s{sX1}, 6")
        a(f"s_add_u32 s{sX1}, s{sX1}, s{sX0}")
        a(f"v_add_u32 v{WR + 2}, s{sX1}, v{WR}")

    def xreads():
        for i in range(4):
            for u in range(2):
                a(f"ds_read_b128 {vr(XF + 16 * u + 4 * i, 4)}, v{WR + 1 + i // 2} offset:{u * 4352 + (i & 1) * 64}")
        a("s_waitcnt lgkmcnt(0)")

    def tr_addr(img):
        a(f"v_and_b32 v{vP}, 15, v{vLANE}")
        a(f"v_lshrrev_b32 v{vP + 1}, 4, v{vLANE}")
        a(f"v_lshrrev_b32 v{WR}, 3, v{vP}")
        a(f"v_lshl_add_u32 v{WR}, v{vP + 1}, 1, v{WR}")
        a(f"v_mul_u32_u24 v{vTA0}, 1088, v{WR}")
        a(f"s_lshr_b32 s{sX0}, s{sHW}, 2")
        a(f"s_lshl_b32 s{sX0}, s{sX0}, 8")
        a(f"s_add_u32 s{sX0}, s{sX0}, {img}")
        a(f"v_add_u32 v{vTA0}, s{sX0}, v{vTA0}")
        a(f"v_and_b32 v{WR}, 3, v{vP}")
        a(f"v_lshl_add_u32 v{vTA0}, v{WR}, 3, v{vTA0}")
        a(f"v_bfe_u32 v{WR}, v{vP}, 2, 1")
        a(f"v_mul_u32_u24 v{WR + 1}, 480, v{WR}")
        a(f"v_add_u32 v{vTA1}, v{WR + 1}, v{vTA0}")
        a(f"v_mul_u32_u24 v{WR + 1}, 544, v{WR}")
        a(f"v_add_u32 v{vTA0}, v{WR + 1}, v{vTA0}")

    RD = 4

    def gemm(steps):
        st = Stream(a)
        fr = [(s, c) for s in steps for c in range(8)]

        def wread(n):
            s, c = fr[n]
            ad = vTA1 if c & 1 else vTA0
            for rd in range(2):
                st.emit(f"ds_read_b64_tr_b16 {vr(WR + 4 * (n % RD) + 2 * rd, 2)}, v{ad} offset:{(16 * s + 8 * rd) * 1088 + c * 32}")

        for n in range(RD - 1):
            wread(n)
        for n, (s, c) in enumerate(fr):
            if n + RD - 1 < len(fr):
                wread(n + RD - 1)
            for u in range(2):
                d = HA + 32 * u + 4 * c
                st.emit(f"v_mfma_f32_16x16x32_bf16 {vr(d, 4)}, {vr(XF + 16 * u + 4 * s, 4)}, {vr(WR + 4 * (n % RD), 4)}, {vr(d, 4) if s else '0'}")

    def scale(u):
        for c in range(8):
            for m in range(4):
                d = HA + 32 * u + 4 * c + m
                a(f"v_mul_f32 v{d}, s{38 if c & 1 else 36}, v{d}")

    def scales():
        for r, v in ((36, LOG2E), (38, HS)):
            a(f"s_mov_b32 s{r}, {f32(v)}")
            a(f"s_mov_b32 s{r + 1}, {f32(v)}")

    def store_a():
        for u in range(2):
            scale(u)
            for j in range(4):
                r = HA + 32 * u + j
                o = WR + 4 * j
                a(f"v_cvt_pk_bf16_f32 v{vP}, v{r}, v{r + 8}")
                a(f"v_cvt_pk_bf16_f32 v{vP + 1}, v{r + 16}, v{r + 24}")
                a(f"v_perm_b32 v{o}, v{r + 4}, v{vP}, s{sX2}")
                a(f"v_perm_b32 v{o + 1}, v{r + 12}, v{vP}, s{sX3}")
                a(f"v_perm_b32 v{o + 2}, v{r + 20}, v{vP + 1}, s{sX2}")
                a(f"v_perm_b32 v{o + 3}, v{r + 28}, v{vP + 1}, s{sX3}")
                a(f"buffer_store_dwordx4 {vr(o, 4)}, v{vSO}, {sr(sA, 4)}, {'s20' if u else '0'} offen offset:{j * 512}{opt.asc}")

    helper_setup()
    a("s_waitcnt lgkmcnt(0)")
    srd(a, sX, 40, 41, N * 256)
    srd(a, 32, sW1P, sW1P + 1, 257 * 512)
    a(f"s_add_u32 s{sX + 2}, s{sQ}, 1")
    a(f"s_mul_i32 s{sX + 2}, s{sX + 2}, {BN * 256}")
    a(f"s_min_u32 s{sX + 2}, s{sX + 2}, {N * 256:#x}")
    xdma("")
    for i in range(2):
        wdma(i, WAI, 0)
    stamp(a, opt, 'i0')
    descriptors()
    a(f"s_getpc_b64 {sr(sTMP, 2)}")
    a.label("pc_here")
    a(f"s_add_u32 s{sTMP}, s{sTMP}, lut_jobs - pc_here")
    a(f"s_addc_u32 s{sTMP + 1}, s{sTMP + 1}, 0")
    a(f"s_lshl_b32 s{sX1}, s{sW}, 3")
    a(f"s_load_dwordx2 {sr(sJOBS, 2)}, {sr(sTMP, 2)}, s{sX1}")
    a(f"v_lshl_add_u32 v{vSO}, v{vP + 1}, 2, s{sX3}")
    a(f"v_lshlrev_b32 v{vSO}, 9, v{vSO}")
    a(f"v_lshl_add_u32 v{vSO}, v{vP}, 4, v{vSO}")
    a(f"s_lshr_b32 s{sX0}, s{sHW}, 2")
    a(f"s_lshl_b32 s{sX0}, s{sX0}, 8")
    a(f"v_add_u32 v{vSO}, s{sX0}, v{vSO}")
    tr_addr(WAI)
    xfrags()
    swbar(a, 1, "h0", 0, 1, lambda: [wdma(i, WAI, 0) for i in (2, 3)])
    stamp(a, opt, 'h0')
    xreads()
    gemm([0, 1])
    stamp(a, opt, 'g0')
    swbar(a, 1, "h1", 0)
    stamp(a, opt, 'h1')

    def wb_loads():
        for i in range(4):
            wdma(i, WBI, 65536)
        a(f"s_sub_u32 s{sWO}, s{sWO}, 2048")
        a(f"s_sub_u32 s{sMO}, s{sMO}, {8 * 1088}")
        for i in range(4):
            wdma(i, WBI, 65536)

    if opt.wbearly:
        a(f"s_bitcmp0_b32 s{sHW}, 2")
        a("s_cbranch_scc1 no_wb")
        wb_loads()
        a.label("no_wb")
    gemm([2, 3])
    a("s_mov_b64 exec, 1")
    a(f"v_mov_b32 v{vBA}, {SWC + 8}")
    a(f"v_mov_b32 v{vBV}, 1")
    a(f"ds_add_u32 v{vBA}, v{vBV}")
    a("s_mov_b64 exec, -1")
    stamp(a, opt, 'g1')
    a(f"s_add_u32 s{sA + 2}, s{sQ}, 1")
    a(f"s_mul_i32 s{sA + 2}, s{sA + 2}, {BN * 512}")
    a(f"s_min_u32 s{sA + 2}, s{sA + 2}, {N * 512:#x}")
    a(f"s_mov_b32 s{sX2}, 0x07060100")
    a(f"s_mov_b32 s{sX3}, 0x07060302")
    a("s_mov_b32 s20, 8192")
    scales()
    a(f"s_bitcmp1_b32 s{sHW}, 2")
    a("s_cbranch_scc1 second_half")
    store_a()
    stamp(a, opt, 'stA')
    swbar(a, 1, "h2", 0)
    stamp(a, opt, 'h2')
    a(f"s_cmp_lg_u32 s{sW}, 11")
    a("s_cbranch_scc1 stored")
    lds_wait(a, SWC, 8, "kept")
    publish(a, 1)
    a("s_branch stored")
    a.label("second_half")
    if not opt.wbearly:
        wb_loads()
    swbar(a, 1, "h2b", 0)
    stamp(a, opt, 'h2')
    store_a()
    stamp(a, opt, 'stA')
    a.label("stored")
    a(f"s_mov_b32 s{sA + 2}, {(N + 1) * 512:#x}")
    a.label("b_part")
    tr_addr(WBI)
    gemm(range(4))
    stamp(a, opt, 'g2')
    BK = XF
    a(f"v_and_b32 v{vP}, 15, v{vLANE}")
    a(f"v_lshrrev_b32 v{vP + 1}, 4, v{vLANE}")
    a(f"s_and_b32 s{sX0}, s{sHW}, 3")
    a(f"s_lshl_b32 s{sX0}, s{sX0}, 5")
    a(f"v_lshl_add_u32 v{vSO}, v{vP + 1}, 2, s{sX0}")
    a(f"v_mul_u32_u24 v{vXS}, {SROW}, v{vSO}")
    a(f"v_lshl_add_u32 v{vXS}, v{vP}, 4, v{vXS}")
    a(f"s_lshr_b32 s{sX0}, s{sHW}, 2")
    a(f"s_lshl_b32 s{sX0}, s{sX0}, 8")
    a(f"v_add_u32 v{vXS}, s{sX0}, v{vXS}")
    scales()
    for u in range(2):
        scale(u)
        for j in range(4):
            r = HA + 32 * u + j
            o = BK + 16 * u + 4 * j
            a(f"v_cvt_pk_bf16_f32 v{o}, v{r}, v{r + 8}")
            a(f"v_cvt_pk_bf16_f32 v{o + 1}, v{r + 16}, v{r + 24}")
            a(f"v_cvt_pk_bf16_f32 v{o + 2}, v{r + 4}, v{r + 12}")
            a(f"v_cvt_pk_bf16_f32 v{o + 3}, v{r + 20}, v{r + 28}")
    swbar(a, 1, "h3")
    stamp(a, opt, 'h3')
    for u in range(2):
        a(f"v_cmpx_gt_u32 vcc, {100 - 16 * u}, v{vSO}")
        for j in range(4):
            a(f"ds_write_b128 v{vXS}, {vr(BK + 16 * u + 4 * j, 4)} offset:{SR + (16 * u + j) * SROW}")
    a("s_mov_b64 exec, -1")
    constants()
    lut_gen(a, sJOBS, "")
    stamp(a, opt, 'lut')
    a(f"s_cmp_lg_u32 s{sW}, 15")
    a("s_cbranch_scc1 joined")
    a(f"s_cmp_lg_u32 s{sROUND}, 0")
    a("s_cbranch_scc1 joined")
    a(f"v_mov_b32 v{vBA}, 0")
    a(f"ds_read_b32 v{vBV}, v{vBA} offset:{GOI + 52}")
    a("s_waitcnt lgkmcnt(0)")
    a(f"v_cmp_ne_u32 vcc, 0, v{vBV}")
    a("s_cbranch_vccnz joined")
    await_all(a, 1)
    stamp(a, opt, 'flagB')
    a("s_branch joined")
    a.label("next_round")
    a("s_waitcnt vmcnt(0) lgkmcnt(0)")
    a("s_barrier")
    a(f"s_cmp_lt_u32 s{sW}, 8")
    a("s_cbranch_scc1 chain_init")
    helper_setup()
    srd(a, 32, sW1P, sW1P + 1, 257 * 512)
    xdma("r")
    xfrags()
    swbar(a, 1, "h4", 0)
    xreads()
    swbar(a, 1, "h5")
    for i in range(4):
        wdma(i, WBI, 65536)
    swbar(a, 1, "h6", 0)
    a("s_branch b_part")
    a.label("joined")
    a("s_waitcnt vmcnt(0) lgkmcnt(0)")
    if opt.prio:
        a("s_setprio 3")
    a("s_barrier")
    stamp(a, opt, 'b4', True)
    a(f"s_cmp_lg_u32 s{sW}, 15")
    a("s_cbranch_scc1 no_pub_2")
    a(f"s_cmp_lg_u32 s{sROUND}, 0")
    a("s_cbranch_scc1 no_pub_2")
    publish(a, 2)
    a.label("no_pub_2")
    a(f"ds_read_b32 v{vT + 2}, v{vRA} offset:4")
    a(f"v_lshlrev_b32 v{vT}, 2, v{vLANE}")
    a(f"ds_read_b32 v{vTT}, v{vT} offset:{TT}")
    for i in range(8):
        a(f"v_mov_b32 v{regs(opt)['HL'] + i}, 0")
    a("s_waitcnt lgkmcnt(0)")
    a(f"v_readfirstlane_b32 s{sMORE}, v{vT + 2}")
    a(f"s_mov_b32 s{sPI}, s{sW}")
    a(f"s_mov_b32 s{sCI}, s{sW}")
    a(f"s_mov_b64 {sr(sFIFO, 2)}, 0")
    a(f"s_mov_b32 s{sFCNT}, 0")
    hop_p(a, "init", 0, NR, claim=False)
    for k in range(NR):
        for x in rec_read(k, NR):
            a(x)
        a(f"s_mov_b32 s{sPG}, s{sPR}")
        a(f"s_sub_u32 s{sPREM}, s{sPREM}, 1")
        a(f"s_cmp_lg_u32 s{sPREM}, 0")
        a(f"s_cbranch_scc1 prime_{k}")
        hop_p(a, f"prime{k}", (k + 1) % NR, NR, dyn=opt.dyn)
        a.label(f"prime_{k}")
        if k < NR - 1:
            a("s_waitcnt lgkmcnt(0)")
            for x in gathers(k):
                a(x)
    switch_in(a, opt, "init")
    stamp(a, opt, 'prime', True)
    dummy = Asm()
    st = Stream(dummy)
    for ph in range(NR):
        iteration(dummy, st, opt, ph)
    st.a = a
    start = [set(p) for p in st.pend]
    a.label("loop_top")
    for ph in range(NR):
        iteration(a, st, opt, ph)
    assert [set(p) for p in st.pend] == start
    a("s_branch loop_top")
    for ph in range(NR):
        a.label(f"hookP_{ph}")
        hop_p(a, f"h{ph}", (ph + 1) % NR, NR, dyn=opt.dyn)
        a(f"s_branch backP_{ph}")
        a.label(f"hookC_{ph}")
        flush(a, f"h{ph}")
        a(f"s_and_b32 s{sCI}, s{sFIFO}, 0xff")
        a(f"s_lshr_b64 {sr(sFIFO, 2)}, {sr(sFIFO, 2)}, 8")
        a(f"s_sub_u32 s{sFCNT}, s{sFCNT}, 8")
        a(f"s_cmp_ge_u32 s{sCI}, {NTASK}")
        a("s_cbranch_scc1 loop_exit")
        switch_in(a, opt, f"h{ph}")
        a(f"s_branch backC_{ph}")
    a.label("loop_exit")
    stamp(a, opt, 'exit')
    if opt.prio:
        a("s_setprio 0")
    a(f"s_cmp_eq_u32 s{sMORE}, 0")
    a("s_cbranch_scc1 last_round")
    a(f"s_add_u32 s{sROUND}, s{sROUND}, 1")
    a("s_branch next_round")
    a.label("last_round")
    a(f"s_cmp_lg_u32 s{sOK}, 0")
    a("s_cbranch_scc1 w2_ok")
    await_second(a, "end")
    a.label("w2_ok")
    WF, OA, SF, BB = 0, 64, 80, 96
    a(f"s_and_b32 s{sX0}, s{sW}, 3")
    a(f"s_lshr_b32 s{sX1}, s{sW}, 2")
    a(f"s_lshl_b32 s{sX2}, s{sX0}, 14")
    a(f"s_add_u32 s{sX2}, s{sX2}, {W2F:#x}")
    a(f"v_lshlrev_b32 v{vT}, 4, v{vLANE}")
    a("s_waitcnt lgkmcnt(0)")
    for f in range(16):
        if f % 4 == 0 and f:
            a(f"s_add_u32 s{sX2}, s{sX2}, 4096")
        a(f"buffer_load_dwordx4 {vr(WF + 4 * f, 4)}, v{vT}, {sr(sWS, 4)}, s{sX2} offen offset:{(f % 4) * 1024} sc1")
    srd(a, sTMP, sB2P, sB2P + 1, 256)
    a(f"v_lshrrev_b32 v{vT + 1}, 5, v{vLANE}")
    a(f"s_lshl_b32 s{sX2}, s{sX0}, 6")
    a(f"v_lshl_add_u32 v{vT + 2}, v{vT + 1}, 5, s{sX2}")
    a(f"buffer_load_dwordx4 {vr(BB, 4)}, v{vT + 2}, {sr(sTMP, 4)}, 0 offen")
    a(f"buffer_load_dwordx4 {vr(BB + 4, 4)}, v{vT + 2}, {sr(sTMP, 4)}, 0 offen offset:16")
    a(f"v_and_b32 v{vT + 3}, 31, v{vLANE}")
    a(f"s_lshl_b32 s{sX1}, s{sX1}, 5")
    a(f"v_add_u32 v{vT + 3}, s{sX1}, v{vT + 3}")
    a(f"v_mul_u32_u24 v{vT + 4}, {SROW}, v{vT + 3}")
    a(f"v_lshl_add_u32 v{vT + 4}, v{vT + 1}, 4, v{vT + 4}")
    a(f"v_lshlrev_b32 v{vT + 5}, 2, v{vT + 3}")
    a(f"v_add_u32 v{vT + 5}, {DEGT}, v{vT + 5}")
    a(f"s_mul_i32 s{sX1}, s{sQ}, {BN * 256}")
    a(f"v_lshl_add_u32 v{vT + 2}, v{vT + 3}, 8, v{vT + 2}")
    a(f"ds_read_b32 v{vT + 6}, v{vT + 5}")
    a("s_waitcnt vmcnt(0) lgkmcnt(0)")
    a(f"v_cvt_f32_u32 v{vT + 6}, v{vT + 6}")
    for k in range(8):
        a(f"v_lshlrev_b32 v{OA + 2 * k}, 16, v{BB + k}")
        a(f"v_and_b32 v{OA + 2 * k + 1}, 0xffff0000, v{BB + k}")
    for k in range(16):
        a(f"v_mul_f32 v{OA + k}, v{vT + 6}, v{OA + k}")
    a("s_barrier")
    stamp(a, opt, 'b5', True)
    st = Stream(a)

    def sread(f):
        st.emit(f"ds_read_b128 {vr(SF + 4 * (f % 6), 4)}, v{vT + 4} offset:{SR + 32 * f}")

    for f in range(6):
        sread(f)
    for f in range(16):
        st.emit(f"v_mfma_f32_32x32x16_bf16 {vr(OA, 16)}, {vr(WF + 4 * f, 4)}, {vr(SF + 4 * (f % 6), 4)}, {vr(OA, 16)}")
        if f + 6 < 16:
            sread(f + 6)
    a(f"s_lshl_b32 s{sX2}, s{sW}, 11")
    a(f"s_add_u32 s{sX2}, s{sX2}, {LUTO}")
    a(f"v_and_b32 v{vT + 5}, 31, v{vLANE}")
    a(f"v_lshlrev_b32 v{vT + 5}, 6, v{vT + 5}")
    a(f"v_lshl_add_u32 v{vT + 5}, v{vT + 1}, 5, v{vT + 5}")
    a(f"v_add_u32 v{vT + 5}, s{sX2}, v{vT + 5}")
    a(f"v_lshl_add_u32 v{vT + 6}, v{vLANE}, 4, s{sX2}")
    a(f"v_lshrrev_b32 v{vT + 4}, 2, v{vLANE}")
    a(f"s_lshr_b32 s{sX2}, s{sW}, 2")
    a(f"s_lshl_b32 s{sX2}, s{sX2}, 5")
    a(f"v_add_u32 v{vT + 4}, s{sX2}, v{vT + 4}")
    a(f"v_and_b32 v{vT + 2}, 3, v{vLANE}")
    for k in range(8):
        a(f"v_cvt_pk_bf16_f32 v{WF + k}, v{OA + 2 * k}, v{OA + 2 * k + 1}")
    a(f"ds_write_b128 v{vT + 5}, {vr(WF, 4)}")
    a(f"ds_write_b128 v{vT + 5}, {vr(WF + 4, 4)} offset:16")
    a(f"ds_read_b128 {vr(WF + 8, 4)}, v{vT + 6}")
    a(f"ds_read_b128 {vr(WF + 12, 4)}, v{vT + 6} offset:1024")
    a(f"v_lshlrev_b32 v{vT + 2}, 4, v{vT + 2}")
    a(f"s_lshl_b32 s{sX0}, s{sX0}, 6")
    a(f"v_lshl_add_u32 v{vT + 2}, v{vT + 4}, 8, v{vT + 2}")
    a(f"s_add_u32 s{sX1}, s{sX1}, s{sX0}")
    a(f"s_add_u32 s{sX0}, s{sX1}, 4096")
    a(f"v_cmpx_gt_u32 vcc, {BN}, v{vT + 4}")
    a("s_cbranch_execz main_end")
    a("s_waitcnt lgkmcnt(1)")
    a(f"buffer_store_dwordx4 {vr(WF + 8, 4)}, v{vT + 2}, {sr(sOUT, 4)}, s{sX1} offen{opt.outmod}")
    a(f"v_cmpx_gt_u32 vcc, {BN - 16}, v{vT + 4}")
    a("s_cbranch_execz main_end")
    a("s_waitcnt lgkmcnt(0)")
    a(f"buffer_store_dwordx4 {vr(WF + 12, 4)}, v{vT + 2}, {sr(sOUT, 4)}, s{sX0} offen{opt.outmod}")
    a.label("main_end")
    if opt.stamps:
        a("s_mov_b64 exec, -1")
    stamp_out(a, opt)
    a.label("main_done")
    a("s_endpgm")
    if opt.lut:
        a(".p2align 6")
        a.label("lut_jobs")
        for w_ in lut_words():
            a(f".long {w_:#x}")
    return dict(vgpr=128, sgpr=102 if opt.stamps else 80, lds=163840, grid=NB, block=1024)


def build(opt):
    m = Asm()
    im = gen_main(m, opt)
    kn = NAME + "_kernel"
    out = HEADER
    out += f"; @launch grid=({im['grid']},1,1) block=({im['block']},1,1) lds={im['lds']}\n"
    out += '.amdgcn_target "amdgcn-amd-amdhsa--gfx950"\n.text\n'
    out += f".globl {kn}\n.p2align 8\n.type {kn},@function\n" + m.text()
    out += '.section .rodata,"a"\n.p2align 6\n' + kd(kn, im)
    return out, None, im


if __name__ == "__main__":
    ap = argparse.ArgumentParser()
    ap.add_argument("-o", default=f"cdna_kernels/{NAME}.s")
    ap.add_argument("--stamps", nargs="?", const=DEFST, default="")
    ap.add_argument("--pstamps", action="store_true")
    ap.add_argument("--nostore", action="store_true")
    ap.add_argument("--stmod", default="")
    ap.add_argument("--lut", action="store_true")
    ap.add_argument("--pair", action="store_true")
    ap.add_argument("--ring", type=int, default=3)
    ap.add_argument("--prio", type=int, default=1)
    ap.add_argument("--dyn", type=int, default=1)
    ap.add_argument("--lutsplit", type=int, default=16)
    ap.add_argument("--lutsplit2", type=int, default=48)
    ap.add_argument("--k1pre", type=int, default=1)
    ap.add_argument("--k1ring", type=int, default=8)
    ap.add_argument("--pf", type=int, default=0)
    ap.add_argument("--gsplit", type=int, default=3)
    ap.add_argument("--gprio", type=int, default=0)
    ap.add_argument("--nap", type=int, default=4)
    ap.add_argument("--hpre", type=int, default=2)
    ap.add_argument("--wb", type=lambda x: [int(c) for c in x], default=[3, 3, 3, 3])
    ap.add_argument("--gsc", default="")
    ap.add_argument("--wbearly", type=int, default=1)
    ap.add_argument("--poll", default="atomic")
    ap.add_argument("--asc", default=" sc1")
    ap.add_argument("--rt", action="store_true")
    ap.add_argument("--exp", default="")
    ap.add_argument("--ntin", type=int, default=0)
    ap.add_argument("--outmod", default="")
    ap.add_argument("--wsbase", type=lambda x: int(x, 0), default=0)
    opt = ap.parse_args()
    opt.lut = True
    POLL_NAP = opt.nap
    POLL = opt.poll
    GSC = opt.gsc
    EXP.update(x for x in opt.exp.split(",") if x)
    txt, ib, im = build(opt)
    open(opt.o, "w").write(txt)
    import asmcheck
    r = asmcheck.check(txt, [{f's{sW}': w, f's{sROUND}': 0, f's{sCAP}': CAP1, 's30': w & 7} for w in (0, 1, 2, 3, 5, 7, 8, 9, 11, 15)] +
                       [{f's{sW}': w, 's30': w & 7} for w in (0, 5, 8, 9, 15)])
    for x in r:
        print(x)
    print(len(r), "findings;", len(txt.splitlines()), "lines;", ib, im)
```
